```python
import torch

def _softmax(x, axis=-1):
    return torch.softmax(x, dim=axis)
def _gelu(x):
    return torch.nn.functional.gelu(x, approximate="tanh")
def _silu(x):
    return torch.nn.functional.silu(x)
def _sigmoid(x):
    return torch.sigmoid(x)
def _layernorm(x, axis=-1, eps=1e-5):
    m = x.mean(dim=axis, keepdim=True)
    v = x.var(dim=axis, keepdim=True, unbiased=False)
    return (x - m) / torch.sqrt(v + eps)
def _scatter_add(tgt, idx, src, axis=0):
    return tgt.clone().index_add_(axis, idx, src)
def _segment_sum(src, seg, n):
    out = torch.zeros((n,) + src.shape[1:], dtype=src.dtype)
    return out.index_add_(0, seg, src)
def _pad(x, pw):
    flat = tuple(v for pair in reversed(pw) for v in pair)
    return torch.nn.functional.pad(x, flat)

kernel_name = 'recurrent_scan__mha_block_cached__glu_gated_bilinear__prompt'

def setup_inputs():

    _w = (lambda a: (lambda t: t.to(torch.bfloat16) if t.is_floating_point() else t)(torch.as_tensor(a)))
    def _A_setup():
        B, Sq, D = 1, 2048, 512
        H, Sk, Dh = 32, 2048, 128
        return {
            "x": _w((lambda *s: torch.randn(*s, dtype=torch.bfloat16) * 0.05)(B, Sq, D)),
            "k_cache": _w((lambda *s: torch.randn(*s, dtype=torch.bfloat16) * 1.6)(B, H, Sk, Dh)),
            "v_cache": _w((lambda *s: torch.randn(*s, dtype=torch.bfloat16) * 1.6)(B, H, Sk, Dh)),
            "wq": _w((lambda *s: torch.randn(*s, dtype=torch.bfloat16) * 1.6)(D, H * Dh) * (D ** -0.5)),
            "wo": _w((lambda *s: torch.randn(*s, dtype=torch.bfloat16) * 1.6)(H * Dh, D) * ((H * Dh) ** -0.5)),
        }
    _A_in = _A_setup()

    def _B_setup():
        B, S, D, F = 1, 2048, 512, 1792
        return {
            "x": _w((lambda *s: torch.randn(*s, dtype=torch.bfloat16) * 0.05)(B, S, D)),
            "w_gate": _w((lambda *s: torch.randn(*s, dtype=torch.bfloat16) * 0.2)(D, F) * (D ** -0.5)),
            "w_up": _w((lambda *s: torch.randn(*s, dtype=torch.bfloat16) * 0.2)(D, F) * (D ** -0.5)),
            "w_down": _w((lambda *s: torch.randn(*s, dtype=torch.bfloat16) * 0.2)(F, D) * (F ** -0.5)),
        }
    _B_in = _B_setup()

    return {
        "A_x": _A_in["x"],
        "A_k_cache": _A_in["k_cache"],
        "A_v_cache": _A_in["v_cache"],
        "A_wq": _A_in["wq"],
        "A_wo": _A_in["wo"],
        "B_x": _B_in["x"],
        "B_w_gate": _B_in["w_gate"],
        "B_w_up": _B_in["w_up"],
        "B_w_down": _B_in["w_down"],
    }

def reference(A_x, A_k_cache, A_v_cache, A_wq, A_wo, B_x, B_w_gate, B_w_up, B_w_down):
    def _A_ref(x, k_cache, v_cache, wq, wo):
        B, Sq, D = x.shape
        H, Dh = 32, 128
        q = (lambda x, *d: x.permute(*d))((x @ wq).reshape(B, Sq, H, Dh), 0, 2, 1, 3)
        scores = torch.einsum("bhqd,bhkd->bhqk", q, k_cache) * (Dh ** -0.5)
        p = _softmax(scores, axis=-1)
        o = torch.einsum("bhqk,bhkd->bhqd", p, v_cache)
        return (lambda x, *d: x.permute(*d))(o, 0, 2, 1, 3).reshape(B, Sq, H * Dh) @ wo

    def _B_ref(x, w_gate, w_up, w_down):
        g = torch.einsum("bsd,df->bsf", x, w_gate)
        u = torch.einsum("bsd,df->bsf", x, w_up)
        h = g * u
        return torch.einsum("bsf,fd->bsd", h, w_down)

    x = A_x
    xn = _layernorm(x, axis=-1)
    s = _A_ref(xn, A_k_cache, A_v_cache, A_wq, A_wo)
    g = _silu(_B_ref(xn, B_w_gate, B_w_up, B_w_down))
    return x + s * g
```

```python
import re

TRANS = ("v_exp_f32", "v_log_f32", "v_rcp_f32", "v_rsq_f32", "v_sqrt_f32", "v_sin_f32", "v_cos_f32")

def regs_of(tok):
    tok = tok.strip()
    tok = tok.lstrip("-")
    m = re.fullmatch(r"abs\((.*)\)", tok) or re.fullmatch(r"\|(.*)\|", tok)
    if m: tok = m.group(1)
    m = re.fullmatch(r"([vas])(\d+)", tok)
    if m: return [(m.group(1), int(m.group(2)))]
    m = re.fullmatch(r"([vas])\[(\d+):(\d+)\]", tok)
    if m: return [(m.group(1), i) for i in range(int(m.group(2)), int(m.group(3)) + 1)]
    if tok == "vcc": return [("s", "vcc")]
    if tok == "exec": return [("s", "exec")]
    if tok == "m0": return [("s", "m0")]
    return []

class Ins:
    def __init__(self, text, dma=None, rd=None, wr=None, note=None, wait=None):
        self.text = text; self.dma = dma; self.rd = rd; self.wr = wr; self.note = note
        self.wait = wait
        self.parse()
    def parse(self):
        t = self.text.split(";")[0].strip()
        sp = t.split(None, 1)
        self.op = op = sp[0]
        rest = sp[1] if len(sp) > 1 else ""
        ops = [o.strip() for o in re.split(r",(?![^\[]*\])", rest)] if rest else []
        if ops:
            toks = ops[-1].split()
            if toks:
                self.mods = toks[1:]; ops[-1] = toks[0]
            else: self.mods = []
        else: self.mods = []
        self.ops = ops
        R = []; W = []
        k = "salu"
        if op.startswith("v_mfma") or op.startswith("v_smfmac"):
            k = "mfma"; W = regs_of(ops[0]); self.A = regs_of(ops[1]); self.B = regs_of(ops[2])
            if op.startswith("v_smfmac"):
                self.C = regs_of(ops[0]); self.B = self.B + regs_of(ops[3]); self.passes = 8
            else:
                self.C = regs_of(ops[3]); self.passes = 4 if "16x16x32" in op else 8
            R = self.A + self.B + self.C
        elif op.startswith("v_"):
            k = "valu"
            if op.startswith("v_cmp"):
                W = regs_of(ops[0]); R = sum((regs_of(o) for o in ops[1:]), [])
                if op.startswith("v_cmpx"): W += [("s", "exec")]
            elif op.startswith("v_permlane"):
                W = regs_of(ops[0]) + regs_of(ops[1]); R = list(W)
            elif op.startswith(("v_add_co", "v_sub_co", "v_addc_co")):
                W = regs_of(ops[0]) + regs_of(ops[1]); R = sum((regs_of(o) for o in ops[2:]), [])
            elif op == "v_nop":
                pass
            else:
                W = regs_of(ops[0]); R = sum((regs_of(o) for o in ops[1:]), [])
                if op.startswith(("v_fmac", "v_dot2c", "v_writelane")) or "_dpp" in op: R += W
                if op.startswith("v_cndmask") and len(ops) == 3: R += [("s", "vcc")]
        elif op.startswith("ds_"):
            k = "ds"
            if op.startswith(("ds_read", "ds_bpermute", "ds_swizzle")):
                W = regs_of(ops[0]); R = sum((regs_of(o) for o in ops[1:]), [])
            else:
                R = sum((regs_of(o) for o in ops), [])
        elif op.startswith(("buffer_", "global_")):
            k = "vmem"
            self.lds = "lds" in self.mods
            if op in ("buffer_wbl2", "buffer_inv"): pass
            elif op.startswith("buffer_load") and not self.lds:
                W = regs_of(ops[0]); R = sum((regs_of(o) for o in ops[1:]), [])
            elif op.startswith("global_load"):
                W = regs_of(ops[0]); R = sum((regs_of(o) for o in ops[1:]), [])
            else:
                R = sum((regs_of(o) for o in ops), [])
                if self.lds: R += [("s", "m0")]
                if "atomic" in op and "sc0" in self.mods: W = regs_of(ops[0])
        elif op.startswith(("s_load", "s_memtime", "s_memrealtime")):
            k = "smem"; W = regs_of(ops[0]); R = sum((regs_of(o) for o in ops[1:]), [])
        elif op in ("s_waitcnt", "s_barrier", "s_nop", "s_endpgm", "s_branch", "s_sleep", "s_setprio") or op.startswith("s_cbranch"):
            k = "ctl"
        else:
            if op.startswith("s_cmp"):
                R = sum((regs_of(o) for o in ops), [])
            else:
                W = regs_of(ops[0]); R = sum((regs_of(o) for o in ops[1:]), [])
                if "saveexec" in op: W += [("s", "exec")]; R += [("s", "exec")]
        self.kind = k; self.R = set(R); self.W = set(W)
        self.states = 1
        if op == "s_nop": self.states = int(ops[0]) + 1
    def render(self):
        if self.wait is not None:
            n = self.wait.get("n")
            if self.wait["kind"] == "lgkm":
                return None if n is None and self.wait.get("drop", True) else f"s_waitcnt lgkmcnt({15 if n is None else min(n,15)})"
            return None if n is None and self.wait.get("drop", True) else f"s_waitcnt vmcnt({63 if n is None else min(n,63)})"
        return self.text
    def __repr__(self): return self.render() or "<dropped wait>"

class Prog:
    def __init__(self):
        self.items = []
    def I(self, text, **kw):
        out = None
        for line in text.split("\n"):
            line = line.strip()
            if not line or line.startswith(";"): continue
            out = Ins(line, **kw); self.items.append(out)
        return out
    def add(self, ins): self.items.append(ins); return ins
    def L(self, s): self.items.append(s)
    def WL(self, drop=True): return self.add(Ins("s_waitcnt lgkmcnt(0)", wait=dict(kind="lgkm", n=None, drop=drop)))
    def WV(self, kind="vm", drop=True): return self.add(Ins("s_waitcnt vmcnt(0)", wait=dict(kind=kind, n=None, drop=drop)))
    def text(self):
        out = []
        for it in self.items:
            if isinstance(it, str): out.append(it)
            else:
                r = it.render()
                if r is not None: out.append("    " + r)
        return "\n".join(out) + "\n"
    def seg(self, a, b):
        i = self.items.index(a); j = self.items.index(b)
        return [x for x in self.items[i:j] if isinstance(x, Ins)]
    def trace(self, spec):
        tr = []
        for a, b, n in spec:
            s = self.seg(a, b)
            for t in range(n): tr += [(x, t) for x in s]
        return tr

def tagv(tag, trip):
    if tag is None: return None
    name, i0, stride, slot = tag
    t = i0 + stride * trip
    if isinstance(slot, tuple) and slot[1] is None:
        slot = {"A": 0, "B": 81920}[slot[0]] + (t & 3) * 16384
    return (name, t), slot

def parse_wait(ins):
    if ins.wait is not None:
        n = ins.wait.get("n")
        if n is None: return None, None
        return (None, min(n, 15)) if ins.wait["kind"] == "lgkm" else (min(n, 63), None)
    vm = re.search(r"vmcnt\((\d+)\)", ins.text); lg = re.search(r"lgkmcnt\((\d+)\)", ins.text)
    return (int(vm.group(1)) if vm else None, int(lg.group(1)) if lg else None)

def solve_waits(traces):
    for tr in traces:
        for x, _ in tr:
            if x.wait is not None: x.wait["n"] = None
    for _ in range(6):
        changed = False
        for tr in traces:
            lg = []; vm = []
            n = len(tr)
            for p, (x, trip) in enumerate(tr):
                if x.wait is not None:
                    kind = x.wait["kind"]
                    if kind == "lgkm":
                        q = p + 1; touched = set()
                        while q < n and not (tr[q][0].wait is not None and tr[q][0].wait["kind"] == "lgkm") and not (tr[q][0].wait is None and tr[q][0].op == "s_waitcnt" and "lgkmcnt(0)" in tr[q][0].text):
                            touched |= tr[q][0].R | tr[q][0].W; q += 1
                        need = [i for i, o in enumerate(lg) if o[0] & touched]
                        if x.wait.get("all"): need = list(range(len(lg)))
                        if need:
                            N = len(lg) - 1 - max(need)
                            if x.wait["n"] is None or N < x.wait["n"]: x.wait["n"] = N; changed = True
                    else:
                        isv = lambda y: (y.wait is not None and y.wait["kind"] != "lgkm") or (y.wait is None and y.op == "s_waitcnt" and "vmcnt(0)" in y.text)
                        q = p + 1; touched = set(); tags = set()
                        while q < n and not isv(tr[q][0]):
                            touched |= tr[q][0].R | tr[q][0].W
                            if kind == "vm" and tr[q][0].rd and tr[q][0].rd[0].startswith("p_"): tags.add(tagv(tr[q][0].rd, tr[q][1])[0])
                            q += 1
                        if kind == "vmbar":
                            b = p + 1
                            while b < n and tr[b][0].op != "s_barrier": b += 1
                            p2 = b
                            while p2 < n and not (tr[p2][0].wait is not None and tr[p2][0].wait["kind"] == "vmbar") and not (tr[p2][0].wait is None and tr[p2][0].op == "s_waitcnt" and "vmcnt(0)" in tr[p2][0].text): p2 += 1
                            b2 = p2
                            while b2 < n and tr[b2][0].op != "s_barrier": b2 += 1
                            for q in range(b, b2):
                                if tr[q][0].rd: tags.add(tagv(tr[q][0].rd, tr[q][1])[0])
                        need = [i for i, o in enumerate(vm) if (o[0] & touched) or (o[1] in tags)]
                        if need:
                            N = len(vm) - 1 - max(need)
                            if x.wait["n"] is None or N < x.wait["n"]: x.wait["n"] = N; changed = True
                if x.op == "s_waitcnt":
                    v, l = parse_wait(x)
                    if v is not None: vm = vm[max(0, len(vm) - v):] if v > 0 else []
                    if l is not None: lg = lg[max(0, len(lg) - l):] if l > 0 else []
                elif x.kind == "ds": lg.append((x.W, None))
                elif x.kind == "smem": lg.append((x.W, None))
                elif x.kind == "vmem": vm.append((x.W, tagv(x.dma, trip)[0] if x.dma else None))
        if not changed: break

def live(tr):
    return [(x, t) for x, t in tr if x.render() is not None]

def hazard_need(prod, cons):
    need = 0
    pv = lambda s: set(r for r in s if r[0] in "va")
    ps = lambda s: set(r for r in s if r[0] == "s")
    if prod.kind == "valu":
        w = pv(prod.W)
        if cons.kind == "mfma" and w & cons.R: need = max(need, 2)
        if cons.kind == "valu":
            if prod.op.startswith(TRANS) and w & cons.R and not cons.op.startswith(TRANS): need = max(need, 1)
            if cons.op.startswith("v_permlane") and w & cons.R: need = max(need, 2)
            if "_dpp" in cons.op and w & cons.R: need = max(need, 2)
            if cons.op.startswith(("v_readlane", "v_readfirstlane")) and w & cons.R: need = max(need, 1)
            if ps(prod.W) & cons.R: need = max(need, 2)
            if ("s", "exec") in prod.W: need = max(need, 5 if "_dpp" in cons.op else 4 if cons.op.startswith(("v_read", "v_perm")) else 0)
        if cons.kind == "vmem" and ps(prod.W) & cons.R: need = max(need, 5)
        if cons.kind == "mfma" and ("s", "exec") in prod.W: need = max(need, 4)
        if cons.kind in ("salu", "ctl") and ps(prod.W) & cons.R: need = max(need, 1)
    if prod.kind == "mfma":
        P = prod.passes
        big = {4: 8, 8: 12}[P]; part = {4: 6, 8: 10}[P]; war = {4: 3, 8: 7}[P]
        if cons.kind == "mfma":
            if prod.W & (set(cons.A) | set(cons.B)): need = max(need, big)
            if prod.W & set(cons.C):
                if not (set(cons.C) == prod.W and cons.passes == P): need = max(need, part)
            elif prod.W & cons.W: need = max(need, part)
        elif cons.kind in ("valu", "ds", "vmem"):
            if prod.W & (cons.R | cons.W): need = max(need, big)
            if cons.kind == "valu" and set(prod.C) & cons.W: need = max(need, war)
    if prod.kind == "salu" and ("s", "m0") in prod.W and cons.kind == "vmem" and getattr(cons, "lds", False): need = max(need, 1)
    if prod.kind == "vmem" and "store" in prod.op and ("x3" in prod.op or "x4" in prod.op):
        data = set(regs_of(prod.ops[0] if prod.op.startswith("buffer") else prod.ops[1]))
        if data & cons.W: need = max(need, 2 if cons.kind == "valu" else 1)
    return need

def find_hazards(tr):
    tr = live(tr); out = []
    for p, (x, _) in enumerate(tr):
        dist = 0
        for q in range(p - 1, max(-1, p - 14), -1):
            y = tr[q][0]
            need = hazard_need(y, x)
            if need > dist: out.append((y, x, need - dist))
            dist += y.states
            if dist >= 12: break
    return out

def fix_hazards(prog, traces_fn, verbose=False):
    ins = []
    for _ in range(2000):
        hz = []
        for tr in traces_fn(): hz += find_hazards(tr)
        if not hz: return ins
        y, x, short = hz[0]
        short = max(s for (a, b, s) in hz if b is x)
        i = next(k for k, it in enumerate(prog.items) if it is x)
        prog.items.insert(i, Ins(f"s_nop {short-1}"))
        ins.append((y.text, x.text, short))
        if verbose: print("nop", short, "|", y.text, "->", x.text)
    raise RuntimeError("hazard fixing did not converge")

def check_mem(tr):
    tr = live(tr); errs = []
    lg = []; vm = []
    landed = set(); visible = set()
    slot_reads = {}
    slot_tag = {}
    for p, (x, trip) in enumerate(tr):
        touched = x.R | x.W
        if x.op == "s_waitcnt":
            v, l = parse_wait(x)
            if v is not None:
                k = max(0, len(vm) - v)
                for o in vm[:k]:
                    if o[1] and not any(o2[1] == o[1] for o2 in vm[k:]): landed.add(o[1])
                vm = vm[k:]
            if l is not None:
                if any(o[2] for o in lg) and l != 0: errs.append(f"{p}: counted lgkmcnt with SMEM outstanding")
                k = max(0, len(lg) - l)
                for o in lg[:k]:
                    if o[1] is not None: o[1][1] = True
                lg = lg[k:]
            continue
        for o in lg:
            if o[0] & touched: errs.append(f"{p}: '{x.text}' touches pending LDS/SMEM dest {sorted(o[0]&touched)[:2]}")
        for o in vm:
            if o[0] & touched: errs.append(f"{p}: '{x.text}' touches pending VMEM dest {sorted(o[0]&touched)[:2]}")
        if x.op == "s_barrier":
            visible |= landed
            for rs in slot_reads.values():
                for r in rs:
                    if r[1]: r[2] = True
        if x.kind == "ds":
            rec = None
            if x.rd:
                tg, slot = tagv(x.rd, trip)
                priv = tg[0].startswith("p_")
                if tg not in (landed if priv else visible): errs.append(f"{p}: '{x.text}' reads {tg} before it is visible")
                if slot_tag.get(slot) != tg: errs.append(f"{p}: '{x.text}' reads {tg} but slot {slot} holds {slot_tag.get(slot)}")
                rec = [tg, False, False]; slot_reads.setdefault(slot, []).append(rec)
            lg.append((x.W, rec, False))
        elif x.kind == "smem": lg.append((x.W, None, True))
        elif x.kind == "vmem":
            tg = None
            if x.dma:
                tg, slot = tagv(x.dma, trip)
                priv = tg[0].startswith("p_")
                for r in slot_reads.get(slot, []):
                    if r[0] != tg and not (r[1] if priv else r[2]): errs.append(f"{p}: DMA {tg} overwrites slot {slot} while read of {r[0]} not fenced")
                if slot_tag.get(slot) != tg: slot_reads[slot] = []
                slot_tag[slot] = tg
                landed.discard(tg); visible.discard(tg)
            vm.append((x.W, tg))
            if len(vm) > 63: errs.append(f"{p}: more than 63 VMEM ops outstanding")
        if len([o for o in lg]) > 15 and x.kind == "ds": pass
    return errs
```

```python
import math, struct, sys
from asmlib import *

KN = "recurrent_scan__mha_block_cached__glu_gated_bilinear__prompt"
def f2u(x): return struct.unpack("<I", struct.pack("<f", x))[0]
CSC = math.log2(math.e) / math.sqrt(128.0)
WS_XN, WS_H, WS_O = 0, 0x400000, 0x1000000
SZ_XN, SZ_H, SZ_O = 0x200000, 0x700000, 0x1000000
H_RB, O_RB, X_RB = 56 * 1024, 128 * 1024, 16 * 1024
MF = "v_mfma_f32_16x16x32_bf16"
def vr(b, n=4): return f"v[{b}:{b+n-1}]"
def ar(b, n=4): return f"a[{b}:{b+n-1}]"
def sr(b, n=4): return f"s[{b}:{b+n-1}]"

def srd(P, d, ptr, off, size):
    if off == 0:
        P.I(f"s_mov_b32 s{d}, s{ptr}\ns_mov_b32 s{d+1}, s{ptr+1}")
    else:
        P.I(f"s_add_u32 s{d}, s{ptr}, {off}\ns_addc_u32 s{d+1}, s{ptr+1}, 0")
    P.I(f"s_mov_b32 s{d+2}, {size}\ns_mov_b32 s{d+3}, 0x00020000")

def header(P, name):
    P.L(f".globl {name}\n.p2align 8\n.type {name},@function\n{name}:")

def descriptor(name, vgpr, accum, sgpr=102):
    return f""".p2align 6
.amdhsa_kernel {name}
  .amdhsa_next_free_vgpr {vgpr}
  .amdhsa_next_free_sgpr {sgpr}
  .amdhsa_accum_offset {accum}
  .amdhsa_group_segment_fixed_size 0
  .amdhsa_kernarg_size 96
  .amdhsa_user_sgpr_count 2
  .amdhsa_user_sgpr_kernarg_segment_ptr 1
  .amdhsa_system_sgpr_workgroup_id_x 1
.end_amdhsa_kernel
"""

def red32(P, v, t):
    for m in ("quad_perm:[1,0,3,2]", "quad_perm:[2,3,0,1]", "row_half_mirror", "row_mirror"):
        P.I(f"v_add_f32_dpp v{v}, v{v}, v{v} {m} row_mask:0xf bank_mask:0xf")
    P.I(f"v_mov_b32 v{t}, v{v}\nv_permlane16_swap_b32 v{v}, v{t}\nv_add_f32 v{v}, v{v}, v{t}")

def gen_ln():
    P = Prog(); I = P.I
    header(P, "ln_kernel"); P.L("ln_a:")
    I("s_cmp_ge_u32 s2, 256\ns_cbranch_scc1 ln_end")
    I("s_load_dwordx2 s[4:5], s[0:1], 0\ns_load_dwordx2 s[6:7], s[0:1], 88")
    I("""v_lshrrev_b32 v1, 5, v0
    s_lshl_b32 s3, s2, 3
    v_add_u32 v1, s3, v1
    v_and_b32 v2, 31, v0
    v_lshlrev_b32 v3, 10, v1
    v_lshl_add_u32 v3, v2, 4, v3
    s_waitcnt lgkmcnt(0)""")
    srd(P, 8, 4, 0, 0x200000); srd(P, 12, 6, WS_XN, SZ_XN)
    I("buffer_load_dwordx4 v[8:11], v3, s[8:11], 0 offen\nbuffer_load_dwordx4 v[12:15], v3, s[8:11], 0 offen offset:512")
    I("""v_lshrrev_b32 v4, 4, v1
    v_lshlrev_b32 v4, 14, v4
    v_and_b32 v5, 15, v1
    v_lshl_add_u32 v4, v5, 4, v4
    v_lshrrev_b32 v5, 2, v2
    v_lshl_add_u32 v4, v5, 10, v4
    v_and_b32 v5, 1, v2
    v_lshl_add_u32 v4, v5, 9, v4
    v_bfe_u32 v5, v2, 1, 1
    v_lshl_add_u32 v4, v5, 3, v4
    v_add_u32 v5, 8192, v4
    s_waitcnt vmcnt(0)""")
    for i in range(8):
        I(f"v_lshlrev_b32 v{16+2*i}, 16, v{8+i}\nv_and_b32 v{17+2*i}, 0xffff0000, v{8+i}")
    I("v_add_f32 v6, v16, v17")
    for i in range(2, 16): I(f"v_add_f32 v6, v6, v{16+i}")
    red32(P, 6, 7)
    I(f"v_mul_f32 v6, {hex(f2u(1/512))}, v6")
    for i in range(16): I(f"v_sub_f32 v{16+i}, v{16+i}, v6")
    I("v_mul_f32 v6, v16, v16")
    for i in range(1, 16): I(f"v_fmac_f32 v6, v{16+i}, v{16+i}")
    red32(P, 6, 7)
    I(f"v_mov_b32 v7, {hex(f2u(1e-5))}\nv_fmac_f32 v7, {hex(f2u(1/512))}, v6\nv_rsq_f32 v7, v7")
    I(f"v_mul_f32 v7, {hex(f2u(CSC))}, v7")
    for i in range(16): I(f"v_mul_f32 v{16+i}, v{16+i}, v7")
    for i in range(8): I(f"v_cvt_pk_bf16_f32 v{8+i}, v{16+2*i}, v{17+2*i}")
    I("""buffer_store_dwordx2 v[8:9], v4, s[12:15], 0 offen
    buffer_store_dwordx2 v[10:11], v4, s[12:15], 0 offen offset:256
    buffer_store_dwordx2 v[12:13], v5, s[12:15], 0 offen
    buffer_store_dwordx2 v[14:15], v5, s[12:15], 0 offen offset:256""")
    P.L("ln_end:"); I("s_endpgm"); P.L("ln_z:")
    tf = lambda: [P.trace([("ln_a:", "ln_z:", 1)])]
    finish(P, tf, "ln")
    return P

def finish(P, tf, name, quiet=False):
    solve_waits(tf())
    ins = fix_hazards(P, tf)
    solve_waits(tf())
    assert not sum((find_hazards(t) for t in tf()), [])
    errs = sum((check_mem(t) for t in tf()), [])
    if errs:
        for e in errs[:30]: print("MEMERR", name, e, file=sys.stderr)
        raise SystemExit(1)
    if not quiet:
        print(f"{name}: {sum(isinstance(x, Ins) for x in P.items)} instrs, {len(ins)} nops inserted", file=sys.stderr)
    return ins

class Gaps:
    def __init__(self, n, modulo=False):
        self.n = n; self.mod = modulo
        self.sc = [[] for _ in range(n)]; self.vec = [[] for _ in range(n)]
    def ix(self, g): return g % self.n if self.mod else g
    def cost(self, g): return sum(2 if k in "EM" else 1 for k, _ in self.vec[self.ix(g)])
    def has(self, g, kinds):
        if not self.mod and not (0 <= g < self.n): return False
        return any(k in kinds for k, _ in self.vec[self.ix(g)])
    def fits(self, g, k):
        c = self.cost(g)
        if k in "EM":
            if c: return False
            if k == "E" and (self.has(g - 1, "M") or self.has(g + 1, "M")): return False
            if k == "M" and (self.has(g - 1, "E") or self.has(g + 1, "E") or self.cost(g-1) == 2 and self.has(g - 1, "V")): return False
            return True
        if c >= 2: return False
        if k == "V" and c == 1 and self.has(g + 1, "M"): return False
        return True
    def put(self, g, k, item, force=False):
        assert force or self.fits(g, k), (g, k, self.vec[self.ix(g)])
        v = self.vec[self.ix(g)]
        if k == "D":
            i = 0
            while i < len(v) and v[i][0] == "D": i += 1
            v.insert(i, (k, item))
        else: v.append((k, item))
        return g
    def first(self, g0, k, item, g1=None):
        g = g0
        lim = (g0 + self.n) if self.mod else self.n
        while g < lim and not self.fits(g, k): g += 1
        if g >= lim or (g1 is not None and g > g1):
            g = min(g1 if g1 is not None else self.n - 1, lim - 1); return self.put(max(g, min(g0, lim - 1)), k, item, force=True)
        return self.put(g, k, item)
    def scal(self, g, item):
        self.sc[self.ix(g)].append(item); return g
    def sfirst(self, g0, item, back=False):
        g = g0
        while self.sc[self.ix(g)] and (self.mod or 0 < g < self.n - 1): g += -1 if back else 1
        return self.scal(g, item)

def emit_gaps(P, mf, G, lo=0, hi=None, res=lambda it: it):
    hi = G.n if hi is None else hi
    for g in range(lo, hi):
        if mf[g] is not None: P.add(mf[g])
        for it in G.sc[g] + [it for _, it in G.vec[g]]:
            r = res(it)
            if r is None: continue
            for x in (r if isinstance(r, list) else [r]): P.add(x)

def WL(): return Ins("s_waitcnt lgkmcnt(0)", wait=dict(kind="lgkm", n=None, drop=True))
def WV(kind="vm"): return Ins("s_waitcnt vmcnt(0)", wait=dict(kind=kind, n=None, drop=True))

S_K, S_V, S_WQ, S_WG, S_WU, S_XN, S_H, S_O = 8, 12, 16, 20, 24, 28, 32, 36
S_W, S_HD, S_QB = 40, 41, 42
S_W4K = 43
S_KOFF, S_VOFF = 44, 45
S_WQO, S_GUO, S_XO = 46, 47, 48
S_M0Q, S_M0G = 49, 50
S_CNT, S_PASS, S_T0, S_T1 = 51, 52, 53, 54
S_W2K = 55
V_KV = 1
V_KA = 5
V_VA = 9
V_IDX = 17
V_L16 = 18
V_WQ = 19
V_GU = 23
V_XO = 25
V_QA = 29
V_GA = 33
V_T = 37
V_L = 32
V_CI = 48
V_P = 64
V_S = 128
V_Q = 192
A_O, A_K, A_V, A_ONE = 0, 128, 192, 224
A_X, A_G = 0, 64
LA, LK, LB, LV = 0, 16384, 81920, 98304
def kaddr(i): return ((i + 3) & 3) * 16384
NIT = 132

def att_mfmas(pbuf, do_qk, do_pv, first_pv, smf_first=False):
    mf = []
    for g in range(64):
        kb, qb, k = g >> 4, (g >> 2) & 3, g & 3
        ds = k if (g >> 2) % 2 == 0 else 3 - k
        s = V_S + (kb * 4 + qb) * 4
        c = vr(V_CI + 4 * qb) if k == 0 else vr(s)
        mf.append(Ins(f"{MF} {vr(s)}, {ar(A_K + kb*16 + ds*4)}, {vr(V_Q + (ds*4+qb)*4)}, {c}") if do_qk else None)
    pv = []
    for j in range(64):
        db, qb, k = j >> 3, (j >> 1) & 3, j & 1
        ks = k if qb % 2 == 0 else 1 - k
        o = A_O + (db * 4 + qb) * 4
        c = "0" if (first_pv and k == 0) else ar(o)
        pv.append(Ins(f"{MF} {ar(o)}, {ar(A_V + (db&3)*8 + ks*4)}, {vr(V_P + pbuf*32 + qb*8 + ks*4)}, {c}"))
    smf = [Ins(f"v_smfmac_f32_16x16x64_bf16 {vr(V_L+4*qb)}, {ar(A_ONE)}, {vr(V_P + pbuf*32 + qb*8, 8)}, v{V_IDX}") for qb in range(4)]
    seq = smf + pv
    mf += seq if do_pv else [None] * 68
    return mf
PV0 = 68

def att_table():
    G = Gaps(NIT, modulo=True)
    G.scal(62, ("vmw",)); G.scal(63, ("bar",))
    dm = [65, 66, 67, 69, 71, 73, 75, 77]
    for n in range(4): G.put(dm[n], "M", ("dmav", n))
    for n in range(4): G.put(dm[4 + n], "M", ("dmak", n))
    G.scal(64, ("m0v",)); G.scal(70, ("m0k",)); G.scal(78, ("adv",)); G.scal(79, ("adk",))
    def vread(db, gs):
        for i, g in enumerate(gs):
            G.put(g, "D", ("vrd", db, i))
    vread(2, [68, 68, 70, 70]); vread(3, [76, 76, 78, 78])
    for db in range(4, 8):
        b = PV0 + 8 * (db - 2); vread(db, [b, b + 2, b + 4, b + 5])
    vread(0, [44, 46, 48, 50]); vread(1, [52, 54, 56, 58])
    for i in range(4): G.put(116 + 2 * i, "D", ("krd", 0, i, 1))
    for i in range(4): G.put(124 + 2 * i, "D", ("krd", 1, i, 1))
    for i in range(4): G.put(0 + i, "D", ("krd", 2, i, 0))
    for i in range(4): G.put(4 + i, "D", ("krd", 3, i, 0))
    for g in (131, 15, 31, 47): G.sfirst(g, ("lgw",), back=True)
    for db in range(8): G.sfirst(PV0 + 8 * db - 1, ("lgw",), back=True)
    eg = []; g = 0
    for e in range(64):
        g = max(g, 4 * (e >> 2) + 8)
        while not G.fits(g, "E"): g += 1
        G.put(g, "E", ("exp", e, g // NIT)); eg.append(g)
    g = 0
    for c in range(32):
        g = max(g, eg[2 * c + 1] + 1)
        while not G.fits(g, "V"): g += 1
        assert g < NIT + 4 * (c >> 1), (c, g)
        G.put(g, "V", ("cvt", c, g // NIT))
    return G

def att_res(it, i, trip_stride, have):
    w = it[0]
    tg = lambda nm, t, base: (nm, t, trip_stride, base + kaddr(t))
    if w == "vmw": return WV("vmbar")
    if w == "bar": return Ins("s_barrier")
    if w == "lgw": return WL()
    if w == "m0v": return Ins(f"s_add_u32 m0, s{S_W4K}, {LV + kaddr(i+3)}") if have("dmav", i + 3) else None
    if w == "m0k": return Ins(f"s_add_u32 m0, s{S_W4K}, {LK + kaddr(i+5)}") if have("dmak", i + 5) else None
    if w == "adv": return Ins(f"s_add_u32 s{S_VOFF}, s{S_VOFF}, 16384") if have("dmav", i + 3) else None
    if w == "adk": return Ins(f"s_add_u32 s{S_KOFF}, s{S_KOFF}, 16384") if have("dmak", i + 5) else None
    if w == "dmav":
        return Ins(f"buffer_load_dwordx4 v{V_KV+it[1]}, {sr(S_V)}, s{S_VOFF} offen offset:{1024*it[1]} lds", dma=tg("V", i + 3, LV)) if have("dmav", i + 3) else None
    if w == "dmak":
        return Ins(f"buffer_load_dwordx4 v{V_KV+it[1]}, {sr(S_K)}, s{S_KOFF} offen offset:{1024*it[1]} lds", dma=tg("K", i + 5, LK)) if have("dmak", i + 5) else None
    if w == "vrd":
        db, k = it[1], it[2]; ks, half = k >> 1, k & 1
        if not have("vrd", i): return None
        return Ins(f"ds_read_b64_tr_b16 {ar(A_V + (db&3)*8 + ks*4 + half*2, 2)}, v{V_VA+db} offset:{kaddr(i) + ks*8192 + half*4096}", rd=tg("V", i, LV))
    if w == "krd":
        kb, ds, t = it[1], it[2], i + 1 + it[3]
        if not have("krd", t): return None
        return Ins(f"ds_read_b128 {ar(A_K + kb*16 + ds*4)}, v{V_KA+ds} offset:{kaddr(t) + kb*4096}", rd=tg("K", t, LK))
    if w == "exp":
        t = i + 1 - it[2]
        return Ins(f"v_exp_f32 v{V_S+it[1]}, v{V_S+it[1]}") if have("exp", t) else None
    if w == "cvt":
        c, t = it[1], i + 1 - it[2]
        if not have("exp", t): return None
        n = c >> 1; kb, qb = n >> 2, n & 3
        d = V_P + (t & 1) * 32 + qb * 8 + (kb >> 1) * 4 + (kb & 1) * 2 + (c & 1)
        return Ins(f"v_cvt_pk_bf16_f32 v{d}, v{V_S+2*c}, v{V_S+2*c+1}")
    raise ValueError(w)

def proj_step(P, t, gu, rolled, last):
    blks = ([("G", 0), ("U", 0), ("G", 1), ("U", 1), ("G", 2), ("U", 2), ("G", 3), ("U", 3)] if gu else []) + \
           [(m, ds) for ds in range(4) for m in "XY"]
    nb = len(blks); N = nb * 8
    stride = 2 if rolled else 0
    xb = A_X + (t & 1) * 32
    def acc(b, qb):
        m, i = b
        return {"G": ar(A_G + (i * 4 + qb) * 4), "U": vr(V_P + (i * 4 + qb) * 4),
                "X": vr(V_Q + (i * 4 + qb) * 4), "Y": vr(V_S + (i * 4 + qb) * 4)}[m]
    mf = []
    for bi, b in enumerate(blks):
        for j in range(8):
            qb, k = j >> 1, j & 1; ks = k if qb % 2 == 0 else 1 - k
            mf.append(Ins(f"{MF} {acc(b,qb)}, {ar(A_V + (bi&3)*8 + ks*4)}, {ar(xb + qb*8 + ks*4)}, {acc(b,qb)}"))
    G = Gaps(N)
    def rd(b, k, tt, dst):
        m, i = b; ks, half = k >> 1, k & 1
        so = (tt & 1) * 16384 if rolled else (tt & 3) * 16384 - (t & 2) * 16384 * 0
        so = (tt & 1) * 16384
        if m in "XY":
            return Ins(f"ds_read_b64_tr_b16 {ar(dst + ks*4 + half*2, 2)}, v{V_QA+i} offset:{so + ks*8192 + half*4096 + (8 if m=='Y' else 0)}", rd=("WQ", tt, stride, ("A", None)))
        return Ins(f"ds_read_b64_tr_b16 {ar(dst + ks*4 + half*2, 2)}, v{V_GA+i} offset:{so + (8192 if m=='U' else 0) + ks*4096 + half*2048}", rd=("GU", tt, stride, ("B", None)))
    toggles = []
    for bi in range(nb):
        nxt = bi + 2
        if nxt < nb:
            for k in range(4): G.put(bi * 8 + k, "D", rd(blks[nxt], k, t, A_V + (nxt & 3) * 8))
        elif not last:
            for k in range(4): G.put(bi * 8 + k, "D", rd(blks[nxt - nb], k, t + 1, A_V + (nxt & 3) * 8))
        G.scal(bi * 8 + 7, WL())
    if t & 1 and not last:
        for i in range(4):
            lastq = (nb - 8 + 2 * i + 1 - 2) * 8 + 3
            if gu:
                G.first(max(lastq + 1, 0), "V", Ins(f"v_xor_b32 v{V_QA+i}, 0x8000, v{V_QA+i}"))
                lastg = max((2 * i + 1 - 2) * 8 + 3, -1)
                G.first(lastg + 1 + 4, "V", Ins(f"v_xor_b32 v{V_GA+i}, 0x8000, v{V_GA+i}"))
        if not gu:
            for i in (1, 2, 3): G.first((2 * i - 1) * 8 + 4, "V", Ins(f"v_xor_b32 v{V_QA+i}, 0x8000, v{V_QA+i}"))
            G.first(4, "V", Ins(f"v_xor_b32 v{V_QA}, 0x8000, v{V_QA}"))
    vm_gaps = [g for g in range(N) if g % 8 >= 4]
    if not last:
        xn = A_X + ((t + 1) & 1) * 32
        g = 0
        for n in range(8):
            qb, ks = n >> 1, n & 1
            g = G.first(max(g, vm_gaps[n]), "M", Ins(f"buffer_load_dwordx4 {ar(xn + qb*8 + ks*4)}, v{V_XO+qb}, {sr(S_XN)}, s{S_XO} offen offset:{ks*1024}"))
        G.sfirst(g + 1, Ins(f"s_add_u32 s{S_XO}, s{S_XO}, 2048"))
    B = N // 2
    G.scal(B, Ins("s_barrier"))
    after = [g for g in vm_gaps if g > B + 1]
    dmas = []
    if t <= 5:
        tt = t + 3
        dmas.append(("m0", f"s_mov_b32 m0, s{S_M0Q}"))
        for n in range(4): dmas.append(("d", Ins(f"buffer_load_dwordx4 v{V_WQ+n}, {sr(S_WQ)}, s{S_WQO} offen offset:{1024*n} lds", dma=("WQ", tt, stride, ("A", None)))))
        if gu:
            dmas.append(("m0", f"s_mov_b32 m0, s{S_M0G}"))
            for n in range(2): dmas.append(("d", Ins(f"buffer_load_dwordx4 v{V_GU+n}, {sr(S_WG)}, s{S_GUO} offen offset:{1024*n} lds", dma=("GU", tt, stride, ("B", None)))))
            dmas.append(("m0", f"s_add_u32 m0, s{S_M0G}, 8192"))
            for n in range(2): dmas.append(("d", Ins(f"buffer_load_dwordx4 v{V_GU+n}, {sr(S_WU)}, s{S_GUO} offen offset:{1024*n} lds", dma=("GU", tt, stride, ("B", None)))))
        post = [f"s_add_u32 s{S_WQO}, s{S_WQO}, {64*8192}", f"s_add_u32 s{S_M0Q}, s{S_M0Q}, 16384", f"s_and_b32 s{S_M0Q}, s{S_M0Q}, 0xffff"]
        if gu: post += [f"s_add_u32 s{S_GUO}, s{S_GUO}, {64*3584}", f"s_sub_u32 s{S_T0}, s{S_M0Q}, s{S_W2K}", f"s_add_u32 s{S_M0G}, s{S_T0}, {LB}"]
    else:
        kt = t - 5
        dmas.append(("m0", f"s_add_u32 m0, s{S_W4K}, {LK + kaddr(kt)}"))
        for n in range(4): dmas.append(("d", Ins(f"buffer_load_dwordx4 v{V_KV+n}, {sr(S_K)}, s{S_KOFF} offen offset:{1024*n} lds", dma=("K", kt, 0, LK + kaddr(kt)))))
        dmas.append(("m0", f"s_add_u32 m0, s{S_W4K}, {LV + kaddr(kt)}"))
        for n in range(4): dmas.append(("d", Ins(f"buffer_load_dwordx4 v{V_KV+n}, {sr(S_V)}, s{S_VOFF} offen offset:{1024*n} lds", dma=("V", kt, 0, LV + kaddr(kt)))))
        post = [f"s_add_u32 s{S_KOFF}, s{S_KOFF}, 16384", f"s_add_u32 s{S_VOFF}, s{S_VOFF}, 16384"]
    ai = 0; lastg = B
    for k, d in dmas:
        if k == "m0":
            if after[ai] - 1 <= lastg or G.sc[after[ai] - 1]: ai += 1
            while after[ai] - 1 <= lastg or G.sc[after[ai] - 1]: ai += 1
            G.scal(after[ai] - 1, Ins(d))
        else:
            while not G.fits(after[ai], "M"): ai += 1
            lastg = G.put(after[ai], "M", d); ai += 1
    g = lastg + 1
    for s in post: g = G.sfirst(g, Ins(s)) + 1
    if not last: G.sfirst(N - 2, WV("vmbar"), back=True)
    else: pass
    return mf, G, blks, acc

def gen_main():
    P = Prog(); I = P.I
    header(P, "main_kernel"); P.L("m_a:")
    I("s_cmp_ge_u32 s2, 256\ns_cbranch_scc1 m_end")
    I("""s_load_dwordx4 s[60:63], s[0:1], 8
    s_load_dwordx2 s[64:65], s[0:1], 24
    s_load_dwordx4 s[68:71], s[0:1], 48
    s_load_dwordx2 s[66:67], s[0:1], 88""")
    I(f"""v_lshrrev_b32 v1, 6, v0
    v_and_b32 v0, 63, v0
    s_and_b32 s3, s2, 7
    v_readfirstlane_b32 s{S_W}, v1
    s_lshr_b32 s4, s2, 3
    s_and_b32 s5, s4, 3
    s_lshl_b32 s3, s3, 2
    s_add_u32 s{S_HD}, s3, s5
    s_lshr_b32 s{S_QB}, s4, 2
    s_lshl_b32 s{S_W4K}, s{S_W}, 12
    s_lshl_b32 s{S_W2K}, s{S_W}, 11
    v_lshlrev_b32 v{V_L16}, 4, v0""")
    T = V_T
    I(f"v_lshrrev_b32 v{T}, 4, v0\nv_and_b32 v{T+1}, 15, v0")
    I(f"v_lshlrev_b32 v{T+2}, 1, v{T}\nv_xor_b32 v{T+2}, v{T+2}, v{T+1}")
    for n, fx in enumerate((0, 8, 9, 1)):
        I(f"""v_xor_b32 v{T+3}, {fx}, v{T+2}
        v_lshlrev_b32 v{T+3}, 4, v{T+3}
        v_lshl_add_u32 v{V_KV+n}, v{T}, 8, v{T+3}
        v_lshl_add_u32 v{V_WQ+n}, v{T}, 13, v{T+3}""")
        if n: I(f"v_add_u32 v{V_WQ+n}, {n*(4*8192-1024)}, v{V_WQ+n}")
    I("s_waitcnt lgkmcnt(0)")
    I(f"s_lshl_b32 s3, s{S_HD}, 8\ns_sub_u32 s4, 0x400000, s3")
    srd(P, S_WQ, 64, "s3", "s4")
    srd(P, S_XN, 66, WS_XN, SZ_XN)
    I(f"s_lshl_b32 s3, s{S_HD}, 7\ns_sub_u32 s4, {512*3584}, s3")
    srd(P, S_WG, 68, "s3", "s4"); srd(P, S_WU, 70, "s3", "s4")
    I(f"s_mul_i32 s{S_WQO}, s{S_W}, {16*8192}\ns_mul_i32 s{S_GUO}, s{S_W}, {16*3584}")
    I(f"""v_lshrrev_b32 v{T+3}, 3, v0
    v_and_b32 v{T+4}, 7, v0
    v_and_b32 v{T+5}, 6, v{T+3}
    v_xor_b32 v{T+4}, v{T+4}, v{T+5}
    v_lshlrev_b32 v{T+4}, 4, v{T+4}
    v_mul_u32_u24 v{T+3}, 3584, v{T+3}
    v_add_u32 v{V_GU}, v{T+3}, v{T+4}
    v_add_u32 v{V_GU+1}, {8*3584-1024}, v{V_GU}""")
    for qb in range(4): I(f"v_add_u32 v{V_XO+qb}, {qb*X_RB}, v{V_L16}")
    I(f"s_lshl_b32 s3, s{S_QB}, 2\ns_add_u32 s3, s3, s{S_W}\ns_lshl_b32 s{S_XO}, s3, 16")
    I(f"s_cmp_ge_u32 s{S_HD}, 28\ns_cbranch_scc1 mq_pre")

    def w_dma(tt, gu):
        I(f"s_add_u32 m0, s{S_W4K}, {LA + tt*16384}\ns_nop 0")
        for n in range(4): I(f"buffer_load_dwordx4 v{V_WQ+n}, {sr(S_WQ)}, s{S_WQO} offen offset:{1024*n} lds", dma=("WQ", tt, 0, ("A", None)))
        I(f"s_add_u32 s{S_WQO}, s{S_WQO}, {64*8192}")
        if gu:
            for m, srdn in ((0, S_WG), (1, S_WU)):
                I(f"s_add_u32 m0, s{S_W2K}, {LB + tt*16384 + m*8192}\ns_nop 0")
                for n in range(2): I(f"buffer_load_dwordx4 v{V_GU+n}, {sr(srdn)}, s{S_GUO} offen offset:{1024*n} lds", dma=("GU", tt, 0, ("B", None)))
            I(f"s_add_u32 s{S_GUO}, s{S_GUO}, {64*3584}")
    def kv_dma(kt, k=True, v=True):
        if k:
            I(f"s_add_u32 m0, s{S_W4K}, {LK + kaddr(kt)}\ns_nop 0")
            for n in range(4): I(f"buffer_load_dwordx4 v{V_KV+n}, {sr(S_K)}, s{S_KOFF} offen offset:{1024*n} lds", dma=("K", kt, 0, LK + kaddr(kt)))
            I(f"s_add_u32 s{S_KOFF}, s{S_KOFF}, 16384")
        if v:
            I(f"s_add_u32 m0, s{S_W4K}, {LV + kaddr(kt)}\ns_nop 0")
            for n in range(4): I(f"buffer_load_dwordx4 v{V_KV+n}, {sr(S_V)}, s{S_VOFF} offen offset:{1024*n} lds", dma=("V", kt, 0, LV + kaddr(kt)))
            I(f"s_add_u32 s{S_VOFF}, s{S_VOFF}, 16384")

    def proj_phase(gu, pre):
        P.L(f"{pre}_pre:")
        w_dma(0, gu)
        for n in range(8):
            qb, ks = n >> 1, n & 1
            I(f"buffer_load_dwordx4 {ar(A_X + qb*8 + ks*4)}, v{V_XO+qb}, {sr(S_XN)}, s{S_XO} offen offset:{ks*1024}")
        I(f"s_add_u32 s{S_XO}, s{S_XO}, 2048")
        w_dma(1, gu); w_dma(2, gu)
        I(f"s_lshl_b32 s3, s{S_HD}, 19")
        srd(P, S_K, 60, "s3", 0x80000); srd(P, S_V, 62, "s3", 0x80000)
        I(f"s_mov_b32 s{S_KOFF}, s{S_W4K}\ns_mov_b32 s{S_VOFF}, s{S_W4K}")
        kv_dma(0)
        srd(P, S_H, 66, WS_H, SZ_H); srd(P, S_O, 66, WS_O, SZ_O)
        I(f"s_add_u32 s{S_M0Q}, s{S_W4K}, {3*16384}\ns_add_u32 s{S_M0G}, s{S_W2K}, {LB + 3*16384}\ns_mov_b32 s{S_PASS}, 0")
        I(f"""v_and_b32 v{T+2}, 7, v{T+1}
        v_lshlrev_b32 v{T+2}, 1, v{T+2}
        v_lshrrev_b32 v{T+3}, 3, v{T+1}
        v_mul_u32_u24 v{T+3}, 9, v{T+3}
        v_xor_b32 v{T+2}, v{T+2}, v{T+3}
        v_xor_b32 v{T+2}, v{T+2}, v{T}
        v_lshlrev_b32 v{T+3}, 8, v{T+1}
        v_add_u32 v{T+3}, {LK}, v{T+3}""")
        for ds in range(4):
            I(f"v_xor_b32 v{T+4}, {4*ds}, v{T+2}\nv_lshl_add_u32 v{V_KA+ds}, v{T+4}, 4, v{T+3}")
        I(f"""v_lshrrev_b32 v{T+2}, 2, v0
        v_and_b32 v{T+3}, 7, v{T+2}
        v_lshlrev_b32 v{T+3}, 1, v{T+3}
        v_lshrrev_b32 v{T+4}, 3, v{T+2}
        v_mul_u32_u24 v{T+4}, 9, v{T+4}
        v_xor_b32 v{T+3}, v{T+3}, v{T+4}
        v_and_b32 v{T+4}, 3, v0
        v_xor_b32 v{T+5}, v{T+3}, v{T+4}
        v_lshlrev_b32 v{T+6}, 8, v{T+2}""")
        for ds in range(4):
            I(f"v_xor_b32 v{T+7}, {4*ds}, v{T+5}\nv_lshl_add_u32 v{V_QA+ds}, v{T+7}, 4, v{T+6}")
        I(f"""v_bfe_u32 v{T+4}, v0, 1, 1
        v_xor_b32 v{T+5}, v{T+3}, v{T+4}
        v_and_b32 v{T+7}, 1, v0
        v_lshl_add_u32 v{T+6}, v{T+7}, 3, v{T+6}
        v_add_u32 v{T+6}, {LV}, v{T+6}""")
        for db in range(8):
            I(f"v_xor_b32 v{T+8}, {2*db}, v{T+5}\nv_lshl_add_u32 v{V_VA+db}, v{T+8}, 4, v{T+6}")
        if gu:
            I(f"""v_and_b32 v{T+3}, 6, v{T+2}
            v_xor_b32 v{T+5}, v{T+3}, v{T+4}
            v_lshlrev_b32 v{T+6}, 7, v{T+2}
            v_lshl_add_u32 v{T+6}, v{T+7}, 3, v{T+6}
            v_add_u32 v{T+6}, {LB}, v{T+6}""")
            for fb in range(4):
                I(f"v_xor_b32 v{T+8}, {2*fb}, v{T+5}\nv_lshl_add_u32 v{V_GA+fb}, v{T+8}, 4, v{T+6}")
        I(f"""v_and_b32 v{T+3}, 1, v0
        v_mov_b32 v{T+4}, 0xaaaaaaaa
        v_mul_lo_u32 v{T+3}, v{T+3}, v{T+4}
        v_add_u32 v{V_IDX}, 0x44444444, v{T+3}
        v_mov_b32 v{T+4}, 0x3f803f80""")
        for i in range(4): I(f"v_accvgpr_write_b32 a{A_ONE+i}, v{T+4}")
        for i in range(16): I(f"v_mov_b32 v{V_CI+i}, 0")
        for i in range(128): I(f"v_mov_b32 v{V_S+i}, 0")
        if gu:
            for i in range(64): I(f"v_mov_b32 v{V_P+i}, 0\nv_accvgpr_write_b32 a{A_G+i}, 0")
        P.add(WV("vmbar")); I("s_barrier")
        mf, G, blks, acc = proj_step(P, 0, gu, True, False)
        for bi in range(2):
            m, i = blks[bi]
            for k in range(4):
                ks, half = k >> 1, k & 1
                if m in "XY": I(f"ds_read_b64_tr_b16 {ar(A_V + bi*8 + ks*4 + half*2, 2)}, v{V_QA+i} offset:{ks*8192 + half*4096 + (8 if m=='Y' else 0)}", rd=("WQ", 0, 0, ("A", None)))
                else: I(f"ds_read_b64_tr_b16 {ar(A_V + bi*8 + ks*4 + half*2, 2)}, v{V_GA+i} offset:{(8192 if m=='U' else 0) + ks*4096 + half*2048}", rd=("GU", 0, 0, ("B", None)))
        I(f"s_mov_b32 s{S_CNT}, 0")
        P.add(WL())
        P.L(f".p2align 3\n{pre}_loop:"); P.L(f"{pre}_loop_:")
        emit_gaps(P, mf, G)
        mf, G, blks, acc = proj_step(P, 1, gu, True, False)
        G.sfirst(G.n - 6, Ins(f"s_add_u32 s{S_CNT}, s{S_CNT}, 1"), back=True)
        G.sfirst(G.n - 3, Ins(f"s_cmp_lt_u32 s{S_CNT}, 3"), back=True)
        emit_gaps(P, mf, G)
        I(f"s_cbranch_scc1 {pre}_loop")
        P.L(f"{pre}_tail:")
        mf, G, blks, acc = proj_step(P, 6, gu, False, False)
        emit_gaps(P, mf, G)
        mf, G, blks, acc = proj_step(P, 7, gu, False, True)
        N = G.n
        G.sfirst(N // 2 - 1, WV("vmbar"), back=True)
        for i in range(8):
            kb, ds = i >> 2, i & 3
            G.first(N - 16 + 8 * kb + ds, "D", Ins(f"ds_read_b128 {ar(A_K + kb*16 + ds*4)}, v{V_KA+ds} offset:{kaddr(0) + kb*4096}", rd=("K", 0, 0, LK + kaddr(0))))
        late = []
        if gu:
            g = 0
            G.sfirst(1, Ins(f"s_lshl_b32 s{S_T0}, s{S_QB}, 2")); G.sfirst(2, Ins(f"s_add_u32 s{S_T0}, s{S_T0}, s{S_W}"))
            G.sfirst(3, Ins(f"s_mul_i32 s{S_T0}, s{S_T0}, {4*H_RB}")); G.sfirst(4, Ins(f"s_lshl_b32 s{S_T1}, s{S_HD}, 11"))
            G.sfirst(5, Ins(f"s_add_u32 s{S_T0}, s{S_T0}, s{S_T1}"))
            for qb in range(4): G.first(4 + qb, "V", Ins(f"v_add_u32 v{V_XO+qb}, {qb*H_RB}, v{V_L16}"))
            for fb in range(4):
                for qb in range(4):
                    rdy = (2 * fb + 1) * 8 + 2 * qb + 1 + 5
                    g = max(g, rdy)
                    tmp = V_T + 3 + ((fb * 4 + qb) & 1) * 4
                    u = V_P + (fb * 4 + qb) * 4
                    dst = V_P + ((fb & 2) * 4 + qb) * 4 + (fb & 1) * 2
                    for r in range(4): g = G.first(g, "V", Ins(f"v_accvgpr_read_b32 v{tmp+r}, a{A_G + (fb*4+qb)*4 + r}"))
                    for r in range(4): g = G.first(g, "V", Ins(f"v_mul_f32 v{tmp+r}, v{tmp+r}, v{u+r}"))
                    for r in range(2): g = G.first(g, "V", Ins(f"v_cvt_pk_bf16_f32 v{dst+r}, v{tmp+2*r}, v{tmp+2*r+1}"))
                    if fb & 1:
                        late.append(Ins(f"buffer_store_dwordx4 {vr(V_P + ((fb&2)*4+qb)*4)}, v{V_XO+qb}, {sr(S_H)}, s{S_T0} offen offset:{(fb>>1)*1024}"))
        q0 = N - 64; g2 = 0; tailq = []
        for ds in range(4):
            for qb in range(4):
                x = V_Q + (ds * 4 + qb) * 4; y = V_S + (ds * 4 + qb) * 4
                rdy = q0 + (2 * ds + 1) * 8 + 2 * qb + 1 + 5
                for d, s in ((x, x), (x + 1, x + 2), (x + 2, y), (x + 3, y + 2)):
                    ins = Ins(f"v_cvt_pk_bf16_f32 v{d}, v{s}, v{s+1}")
                    gg = max(g2, rdy)
                    while gg < N and not G.fits(gg, "V"): gg += 1
                    if gg < N and not tailq: g2 = G.put(gg, "V", ins)
                    else: tailq.append(ins)
        emit_gaps(P, mf, G)
        for x in late + tailq: P.add(x)
        for i in range(16): I(f"v_mov_b32 v{V_L+i}, 0")
        P.L(f"{pre}_done:")

    proj_phase(True, "mg")
    P.L("att_pro:")
    TB = att_table()
    def iteration(i, stride, have, do_qk=True, do_pv=True, first_pv=False, lo=0, hi=NIT, extra=None):
        mf = att_mfmas(i & 1, do_qk, do_pv, first_pv)
        def res(it):
            r = att_res(it, i, stride, have)
            if extra and it in extra: return extra[it] + ([r] if r else [])
            return r
        emit_gaps(P, mf, TB, lo, hi, res)
    def prologue():
        have = lambda k, t: t >= 0 and not (k == "dmav" and t == 2)
        k3 = [Ins(f"s_add_u32 m0, s{S_W4K}, {LK + kaddr(3)}"), Ins("s_nop 0")] + \
             [Ins(f"buffer_load_dwordx4 v{V_KV+n}, {sr(S_K)}, s{S_KOFF} offen offset:{1024*n} lds", dma=("K", 3, 0, LK + kaddr(3))) for n in range(4)] + \
             [Ins(f"s_add_u32 s{S_KOFF}, s{S_KOFF}, 16384")]
        P.add(WL())
        iteration(-1, 0, have, do_pv=False, extra={("m0v",): k3})
    prologue()
    P.L("att_it0:")
    allh = lambda k, t: True
    iteration(0, 0, allh, first_pv=True)
    I(f"s_mov_b32 s{S_CNT}, 0\ns_branch att_l1")
    P.L("att_j:")
    P.L(".p2align 3\natt_loop:"); P.L("att_l_:")
    iteration(-1, 4, allh); iteration(0, 4, allh)
    P.L("att_l1:")
    iteration(1, 4, allh)
    iteration(2, 4, allh, extra={("adv",): [Ins(f"s_add_u32 s{S_CNT}, s{S_CNT}, 1")]}, hi=NIT)
    I(f"s_cmp_lt_u32 s{S_CNT}, 8\ns_cbranch_scc1 att_loop")
    P.L("att_tail:")
    have = lambda k, t: t <= 31
    iteration(31, 0, have, do_qk=False)
    P.L("att_epi:")
    T = V_S
    I(f"s_lshl_b32 s{S_T0}, s{S_QB}, 2\ns_add_u32 s{S_T0}, s{S_T0}, s{S_W}\ns_lshl_b32 s{S_T0}, s{S_T0}, 19\ns_lshl_b32 s{S_T1}, s{S_HD}, 12\ns_add_u32 s{S_T0}, s{S_T0}, s{S_T1}")
    lo, hi_ = hex(f2u(2.0 ** -24)), hex(f2u(2.0 ** 48))
    I(f"s_mov_b32 s56, {lo}\ns_mov_b32 s57, {hi_}\ns_mov_b64 s[58:59], -1")
    for qb in range(4):
        I(f"v_add_f32 v{T+qb}, v{V_L+4*qb}, v{V_L+4*qb+1}")
        I(f"v_cmp_le_f32 vcc, s56, v{T+qb}\ns_and_b64 s[58:59], s[58:59], vcc\nv_cmp_ge_f32 vcc, s57, v{T+qb}\ns_and_b64 s[58:59], s[58:59], vcc")
        I(f"v_rcp_f32 v{T+4+2*qb}, v{T+qb}\nv_add_u32 v{T+12+qb}, {qb*O_RB}, v{V_L16}")
    for i in range(8): I(f"v_mov_b32 v{T+16+i}, 0")
    n = 0
    for t in range(4):
        for qb in range(4):
            tmp = T + 24 + (n % 3) * 12; n += 1
            for hb in range(2):
                o = A_O + ((2 * t + hb) * 4 + qb) * 4
                for r in range(4): I(f"v_accvgpr_read_b32 v{tmp+4*hb+r}, a{o+r}")
            for r in range(4): I(f"v_pk_mul_f32 {vr(tmp+2*r,2)}, {vr(tmp+2*r,2)}, {vr(T+4+2*qb,2)} op_sel_hi:[1,0]")
            for r in range(4): I(f"v_cvt_pk_bf16_f32 v{tmp+8+r}, v{tmp+2*r}, v{tmp+2*r+1}")
            I(f"buffer_store_dwordx4 {vr(tmp+8)}, v{T+12+qb}, {sr(S_O)}, s{S_T0} offen offset:{t*1024}")
            I(f"{MF} {vr(T+20)}, {vr(T+16)}, {vr(tmp+8)}, {vr(T+20)}")
    I(f"s_cmp_lg_u32 s{S_PASS}, 0\ns_cbranch_scc1 m_end")
    P.L("att_chk:")
    I(f"v_cmp_o_f32 vcc, v{T+20}, v{T+20}\ns_and_b64 s[58:59], s[58:59], vcc\ns_cmp_eq_u64 s[58:59], -1\ns_cselect_b32 s56, 0, 1")
    I(f"v_mov_b32 v{T}, s56\nv_mov_b32 v{T+1}, s{S_W}\nv_lshlrev_b32 v{T+1}, 2, v{T+1}\nds_write_b32 v{T+1}, v{T}\nv_mov_b32 v{T+1}, 0")
    I(f"s_waitcnt lgkmcnt(0)\ns_barrier\nds_read_b128 {vr(T+4)}, v{T+1}\ns_waitcnt lgkmcnt(0)")
    I(f"v_or_b32 v{T+4}, v{T+4}, v{T+5}\nv_or3_b32 v{T+4}, v{T+4}, v{T+6}, v{T+7}\nv_readfirstlane_b32 s56, v{T+4}\ns_cmp_eq_u32 s56, 0\ns_cbranch_scc1 m_end")
    P.L("fb_a:")
    MX = V_L
    I(f"s_mov_b32 s{S_PASS}, 1\ns_mov_b32 s{S_KOFF}, s{S_W4K}\ns_mov_b32 s{S_CNT}, 0\ns_waitcnt vmcnt(0)")
    for qb in range(4): I(f"v_mov_b32 v{MX+qb}, 0xff800000")
    P.L("fb_loop:")
    I(f"s_barrier\ns_add_u32 m0, s{S_W4K}, {LK}\ns_nop 0")
    for n in range(4): I(f"buffer_load_dwordx4 v{V_KV+n}, {sr(S_K)}, s{S_KOFF} offen offset:{1024*n} lds", dma=("FK", 0, 1, LK))
    I(f"s_add_u32 s{S_KOFF}, s{S_KOFF}, 16384\ns_waitcnt vmcnt(0)\ns_barrier")
    for kb in range(4):
        for ds in range(4): I(f"ds_read_b128 {ar(A_K + kb*16 + ds*4)}, v{V_KA+ds} offset:{kb*4096}", rd=("FK", 0, 1, LK))
        I("s_waitcnt lgkmcnt(0)")
    for kb in range(4):
        for qb in range(4):
            s = V_S + (kb * 4 + qb) * 4
            for ds in range(4): I(f"{MF} {vr(s)}, {ar(A_K + kb*16 + ds*4)}, {vr(V_Q + (ds*4+qb)*4)}, {'0' if ds==0 else vr(s)}")
    for kb in range(4):
        for qb in range(4):
            s = V_S + (kb * 4 + qb) * 4
            I(f"v_max3_f32 v{MX+qb}, v{MX+qb}, v{s}, v{s+1}\nv_max3_f32 v{MX+qb}, v{MX+qb}, v{s+2}, v{s+3}")
    I(f"s_add_u32 s{S_CNT}, s{S_CNT}, 1\ns_cmp_lt_u32 s{S_CNT}, 32\ns_cbranch_scc1 fb_loop")
    P.L("fb_b:")
    for qb in range(4):
        m, t = MX + qb, MX + 4 + qb
        I(f"v_mov_b32 v{t}, v{m}\nv_permlane32_swap_b32 v{m}, v{t}\nv_max_f32 v{m}, v{m}, v{t}")
        I(f"v_mov_b32 v{t}, v{m}\nv_permlane16_swap_b32 v{m}, v{t}\nv_max_f32 v{m}, v{m}, v{t}")
        for r in range(4): I(f"v_sub_f32 v{V_CI+4*qb+r}, 0, v{m}")
    for i in range(16): I(f"v_mov_b32 v{V_L+i}, 0")
    I(f"s_mov_b32 s{S_KOFF}, s{S_W4K}\ns_mov_b32 s{S_VOFF}, s{S_W4K}\ns_barrier")
    for kt in range(3): kv_dma(kt)
    I("s_waitcnt vmcnt(0)\ns_barrier")
    for i in range(8):
        kb, ds = i >> 2, i & 3
        I(f"ds_read_b128 {ar(A_K + kb*16 + ds*4)}, v{V_KA+ds} offset:{kaddr(0) + kb*4096}", rd=("K", 0, 0, LK + kaddr(0)))
    I("s_waitcnt lgkmcnt(0)\ns_branch att_pro")
    P.L("fb_z:")
    T = V_T
    proj_phase(False, "mq")
    I("s_branch att_pro")
    P.L("mq_z:")
    P.L("m_end:"); I("s_endpgm"); P.L("m_z:")

    att = [("att_pro:", "att_j:", 1), ("att_l1:", "att_tail:", 1)]
    def tf():
        body = P.seg("att_l_:", "att_tail:")
        full = []
        for t in range(1, 8): full += [(x, t) for x in body]
        A = P.trace(att) + full + P.trace([("att_tail:", "att_chk:", 1)])
        out = []
        for pre, end in (("mg", "mg_done:"), ("mq", "mq_z:")):
            tr = P.trace([("m_a:", "mg_pre:", 1), (f"{pre}_pre:", f"{pre}_loop_:", 1), (f"{pre}_loop_:", f"{pre}_tail:", 3), (f"{pre}_tail:", end, 1)]) + A
            out.append(tr + P.trace([("att_chk:", "fb_a:", 1), ("m_end:", "m_z:", 1)]))
        out.append(out[0][:-1] + P.trace([("fb_a:", "fb_loop:", 1), ("fb_loop:", "fb_b:", 3), ("fb_b:", "fb_z:", 1)]) + A)
        return out
    finish(P, tf, "main")
    return P

def gen_post():
    P = Prog(); I = P.I
    header(P, "post_kernel"); P.L("p_a:")
    S_WD, S_WO, S_HH, S_OO, S_X, S_OUT = 8, 12, 16, 20, 24, 28
    SW, SRT, SNT, SM0, SWO, SBO = 32, 33, 34, 35, 36, 37
    V_W, V_BH, V_BO, V_A, VL, T = 1, 5, 9, 13, 17, 18
    ACC_D, ACC_S = 64, 128
    A_B, A_A = 0, 128
    I("s_cmp_ge_u32 s2, 256\ns_cbranch_scc1 p_end")
    I("""s_load_dwordx2 s[60:61], s[0:1], 0
    s_load_dwordx2 s[62:63], s[0:1], 32
    s_load_dwordx4 s[64:67], s[0:1], 64
    s_load_dwordx2 s[68:69], s[0:1], 88""")
    I(f"""v_lshrrev_b32 v1, 6, v0
    v_and_b32 v0, 63, v0
    s_and_b32 s3, s2, 7
    v_readfirstlane_b32 s{SW}, v1
    s_lshr_b32 s4, s2, 3
    s_and_b32 s5, s4, 3
    s_lshl_b32 s3, s3, 2
    s_add_u32 s{SRT}, s3, s5
    s_lshr_b32 s{SNT}, s4, 2
    v_lshlrev_b32 v{VL}, 4, v0
    v_lshrrev_b32 v{T}, 3, v0
    v_and_b32 v{T+1}, 7, v0
    v_and_b32 v{T+2}, 6, v{T}
    v_xor_b32 v{T+1}, v{T+1}, v{T+2}
    v_lshlrev_b32 v{T+1}, 4, v{T+1}
    v_lshl_add_u32 v{V_W}, v{T}, 10, v{T+1}""")
    for n in range(1, 4): I(f"v_add_u32 v{V_W+n}, {n*(8192-1024)}, v{V_W}")
    for qb in range(4):
        I(f"s_xor_b32 s3, s{SW}, {qb}\ns_mul_i32 s4, s3, {H_RB}\ns_lshl_b32 s5, s3, 17\nv_add_u32 v{V_BH+qb}, s4, v{VL}\nv_add_u32 v{V_BO+qb}, s5, v{VL}")
    I("s_waitcnt lgkmcnt(0)")
    I(f"s_lshl_b32 s3, s{SNT}, 7\ns_sub_u32 s4, {1792*1024}, s3\ns_sub_u32 s5, {4096*1024}, s3")
    srd(P, S_WD, 64, "s3", "s4"); srd(P, S_HH, 68, WS_H, SZ_H)
    srd(P, S_WO, 62, "s3", "s5"); srd(P, S_OO, 68, WS_O, SZ_O)
    I(f"s_lshl_b32 s{SM0}, s{SW}, 15")
    steps = [("d", i) for i in range(7)] + [("s", i) for i in range(16)]
    def issue(n):
        kind, i = steps[n]; slot = n & 3; out = []
        if i == 0:
            if kind == "d":
                out += [Ins(f"s_mul_i32 s{SWO}, s{SW}, {7*65536}"), Ins(f"s_mul_i32 s{SBO}, s{SRT}, {4*H_RB}"), Ins(f"s_mul_i32 s3, s{SW}, {7*2048}"), Ins(f"s_add_u32 s{SBO}, s{SBO}, s3")]
            else:
                out += [Ins(f"s_lshl_b32 s{SWO}, s{SW}, 20"), Ins(f"s_lshl_b32 s{SBO}, s{SRT}, 19"), Ins(f"s_lshl_b32 s3, s{SW}, 15"), Ins(f"s_add_u32 s{SBO}, s{SBO}, s3")]
        sw, sb, vb = (S_WD, S_HH, V_BH) if kind == "d" else (S_WO, S_OO, V_BO)
        for hf in range(2):
            out += [Ins(f"s_add_u32 m0, s{SM0}, {slot*8192 + hf*4096}")]
            ld = [Ins(f"buffer_load_dwordx4 {ar(A_B + slot*32 + qb*8 + hf*4)}, v{vb+qb}, {sr(sb)}, s{SBO} offen offset:{hf*1024}") for qb in range(4)]
            dm = [Ins(f"buffer_load_dwordx4 v{V_W+k}, {sr(sw)}, s{SWO} offen offset:{k*1024} lds", dma=("p_W", n, 0, ("P", slot))) for k in range(4)]
            out += [ld[0]] + dm + ld[1:] + [Ins(f"s_add_u32 s{SWO}, s{SWO}, 32768")]
        out += [Ins(f"s_add_u32 s{SBO}, s{SBO}, 2048")]
        return out
    for n in range(3):
        for x in issue(n): P.add(x)
    srd(P, S_X, 60, 0, 0x200000); srd(P, S_OUT, 66, 0, 0x200000)
    I(f"""v_lshrrev_b32 v{T+2}, 2, v0
    v_and_b32 v{T+3}, 6, v{T+2}
    v_bfe_u32 v{T+4}, v0, 1, 1
    v_xor_b32 v{T+5}, v{T+3}, v{T+4}
    v_and_b32 v{T+7}, 1, v0
    v_lshlrev_b32 v{T+6}, 7, v{T+2}
    v_lshl_add_u32 v{T+6}, v{T+7}, 3, v{T+6}
    v_add_u32 v{T+6}, s{SM0}, v{T+6}""")
    for nb in range(4): I(f"v_xor_b32 v{T+8}, {2*nb}, v{T+5}\nv_lshl_add_u32 v{V_A+nb}, v{T+8}, 4, v{T+6}")
    def rd(n, nb, k):
        ks, half = k >> 1, k & 1
        return Ins(f"ds_read_b64_tr_b16 {ar(A_A + nb*8 + ks*4 + half*2, 2)}, v{V_A+nb} offset:{(n&3)*8192 + ks*4096 + half*2048}", rd=("p_W", n, 0, ("P", n & 3)))
    P.add(WV())
    for nb in range(2):
        for k in range(4): P.add(rd(0, nb, k))
    P.add(WL())
    for n, (kind, i) in enumerate(steps):
        acc = ACC_D if kind == "d" else ACC_S
        mf = []
        for j in range(32):
            nb, qb, k = j >> 3, (j >> 1) & 3, j & 1; ks = k if qb % 2 == 0 else 1 - k
            a = vr(acc + (nb * 4 + qb) * 4)
            mf.append(Ins(f"{MF} {a}, {ar(A_A + nb*8 + ks*4)}, {ar(A_B + (n&3)*32 + qb*8 + ks*4)}, {'0' if (i==0 and k==0) else a}"))
        G = Gaps(32)
        for nb in range(4):
            if nb < 2:
                for k in range(4): G.put(nb * 8 + k // 2, "D", rd(n, nb + 2, k))
            elif n + 1 < len(steps):
                for k in range(4): G.put(nb * 8 + k // 2, "D", rd(n + 1, nb - 2, k))
            G.scal(nb * 8 + 7, WL())
        if n + 1 < len(steps): G.scal(15, WV())
        if n + 3 < len(steps):
            free = [g for g in range(32) if g % 8 >= 2]
            fi = 0
            for x in issue(n + 3):
                if x.kind == "vmem": G.put(free[fi], "M", x, force=True); fi += 1
                else: G.scal(free[fi], x)
        emit_gaps(P, mf, G)
    I(f"""s_lshl_b32 s3, s{SRT}, 2
    s_add_u32 s3, s3, s{SW}
    s_lshl_b32 s3, s3, 14
    s_lshl_b32 s4, s{SNT}, 7
    s_add_u32 s3, s3, s4
    v_and_b32 v{T}, 15, v0
    v_lshrrev_b32 v{T+1}, 4, v0
    v_lshlrev_b32 v{T+1}, 3, v{T+1}
    v_lshl_add_u32 v{T}, v{T}, 10, v{T+1}""")
    XR = 32
    for nb in range(4): I(f"buffer_load_dwordx2 {vr(XR+2*nb,2)}, v{T}, {sr(S_X)}, s3 offen offset:{32*nb}")
    I("s_barrier")
    for qb in range(1, 4):
        I(f"s_xor_b32 s4, s{SW}, {qb}\ns_mul_i32 s4, s4, 24576\ns_add_u32 s4, s4, {(qb-1)*8192}\nv_add_u32 v{T+1+qb}, s4, v{VL}")
        for m, acc in enumerate((ACC_D, ACC_S)):
            for nb in range(4): I(f"ds_write_b128 v{T+1+qb}, {vr(acc + (nb*4+qb)*4)} offset:{(m*4+nb)*1024}")
    I(f"s_mul_i32 s4, s{SW}, 24576\nv_add_u32 v{T+1}, s4, v{VL}\ns_waitcnt lgkmcnt(0)\ns_barrier")
    for j in range(3):
        for m, acc in enumerate((ACC_D, ACC_S)):
            for nb in range(4): I(f"ds_read_b128 {vr(acc + (nb*4+1+j)*4)}, v{T+1} offset:{j*8192 + (m*4+nb)*1024}")
        I("s_waitcnt lgkmcnt(0)")
    for acc in (ACC_D, ACC_S):
        for nb in range(4):
            b = acc + nb * 16
            for r in range(4): I(f"v_add_f32 v{b+r}, v{b+r}, v{b+4+r}\nv_add_f32 v{b+8+r}, v{b+8+r}, v{b+12+r}")
            for r in range(4): I(f"v_add_f32 v{b+r}, v{b+r}, v{b+8+r}")
    I(f"s_mov_b32 s4, {hex(f2u(1/(CSC*CSC)))}\ns_mov_b32 s5, {hex(f2u(-math.log2(math.e)))}\ns_waitcnt vmcnt(0)")
    for nb in range(4):
        d = ACC_D + nb * 16; s = ACC_S + nb * 16
        for r in range(4): I(f"v_mul_f32 v{d+r}, s4, v{d+r}")
        for r in range(4): I(f"v_mul_f32 v{d+4+r}, s5, v{d+r}")
        for r in range(4): I(f"v_exp_f32 v{d+4+r}, v{d+4+r}")
        for r in range(4): I(f"v_add_f32 v{d+4+r}, 1.0, v{d+4+r}")
        for r in range(4): I(f"v_rcp_f32 v{d+4+r}, v{d+4+r}")
        for r in range(2): I(f"v_lshlrev_b32 v{d+8+2*r}, 16, v{XR+2*nb+r}\nv_and_b32 v{d+9+2*r}, 0xffff0000, v{XR+2*nb+r}")
        for r in range(4): I(f"v_mul_f32 v{d+r}, v{d+r}, v{d+4+r}")
        for r in range(4): I(f"v_fmac_f32 v{d+8+r}, v{d+r}, v{s+r}")
        for r in range(2): I(f"v_cvt_pk_bf16_f32 v{d+12+r}, v{d+8+2*r}, v{d+9+2*r}")
        I(f"buffer_store_dwordx2 {vr(d+12,2)}, v{T}, {sr(S_OUT)}, s3 offen offset:{32*nb}")
    P.L("p_end:"); I("s_endpgm"); P.L("p_z:")
    tf = lambda: [P.trace([("p_a:", "p_z:", 1)])]
    finish(P, tf, "post")
    return P

def build(path):
    ref = open(f"cdna_kernels/{KN}.s.ref").read().split("\n")
    head = [l for l in ref if l.startswith(";") and "@launch" not in l and "Override launch" not in l and "grid=ceil" not in l]
    out = "\n".join(head) + "\n"
    out += "; @launch kernel=ln_kernel grid=(256,1,1) block=(256,1,1) lds=0\n"
    out += "; @launch kernel=main_kernel grid=(256,1,1) block=(256,1,1) lds=163840\n"
    out += "; @launch kernel=post_kernel grid=(256,1,1) block=(256,1,1) lds=131072\n"
    out += '.amdgcn_target "amdgcn-amd-amdhsa--gfx950"\n.text\n'
    out += gen_ln().text() + gen_main().text() + gen_post().text()
    out += '.section .rodata,"a"\n' + descriptor("ln_kernel", 32, 32, 32) + descriptor("main_kernel", 512, 256) + descriptor("post_kernel", 512, 256)
    open(path, "w").write(out)

if __name__ == "__main__":
    build(sys.argv[1] if len(sys.argv) > 1 else f"cdna_kernels/{KN}.s")
```

```python
import math, struct, sys
from asmlib import *

KN = "recurrent_scan__mha_block_cached__glu_gated_bilinear__prompt"
def f2u(x): return struct.unpack("<I", struct.pack("<f", x))[0]
CSC = math.log2(math.e) / math.sqrt(128.0)
WS_XN, WS_H, WS_O = 0, 0x400000, 0x1000000
SZ_XN, SZ_H, SZ_O = 0x200000, 0x700000, 0x1000000
H_RB, O_RB, X_RB = 56 * 1024, 128 * 1024, 16 * 1024
MF = "v_mfma_f32_16x16x32_bf16"
def vr(b, n=4): return f"v[{b}:{b+n-1}]"
def ar(b, n=4): return f"a[{b}:{b+n-1}]"
def sr(b, n=4): return f"s[{b}:{b+n-1}]"

def srd(P, d, ptr, off, size):
    if off == 0:
        P.I(f"s_mov_b32 s{d}, s{ptr}\ns_mov_b32 s{d+1}, s{ptr+1}")
    else:
        P.I(f"s_add_u32 s{d}, s{ptr}, {off}\ns_addc_u32 s{d+1}, s{ptr+1}, 0")
    P.I(f"s_mov_b32 s{d+2}, {size}\ns_mov_b32 s{d+3}, 0x00020000")

DIAG = False
PREF_LN = True
PREF_POST = True
STAMP0 = 72
class Stamper:
    def __init__(self, P, kid): self.P = P; self.kid = kid; self.n = 0
    def __call__(self, n):
        if not DIAG: return
        self.n = max(self.n, n + 1)
        self.P.I(f"s_memtime s[96:97]\ns_memrealtime s[98:99]\ns_waitcnt lgkmcnt(0)\ns_mov_b32 s{STAMP0+2*n}, s96\ns_mov_b32 s{STAMP0+2*n+1}, s98")
    def dump(self, wsptr, wave):
        if not DIAG: return
        I = self.P.I
        I(f"s_load_dwordx2 s[96:97], s[0:1], 88\ns_waitcnt lgkmcnt(0)\ns_add_u32 s92, s96, {0x3000000 + self.kid*0x40000}\ns_addc_u32 s93, s97, 0\ns_mov_b32 s94, 0x40000\ns_mov_b32 s95, 0x00020000")
        I(f"s_lshl_b32 s96, s2, 2\ns_add_u32 s96, s96, s{wave}\ns_lshl_b32 s96, s96, 7\nv_mov_b32 v2, s96")
        for i in range(2 * self.n): I(f"v_mov_b32 v3, s{STAMP0+i}\nbuffer_store_dword v3, v2, s[92:95], 0 offen offset:{4*i}")

def header(P, name):
    P.L(f".globl {name}\n.p2align 8\n.type {name},@function\n{name}:")

def descriptor(name, vgpr, accum, sgpr=102):
    return f""".p2align 6
.amdhsa_kernel {name}
  .amdhsa_next_free_vgpr {vgpr}
  .amdhsa_next_free_sgpr {sgpr}
  .amdhsa_accum_offset {accum}
  .amdhsa_group_segment_fixed_size 0
  .amdhsa_kernarg_size 96
  .amdhsa_user_sgpr_count 2
  .amdhsa_user_sgpr_kernarg_segment_ptr 1
  .amdhsa_system_sgpr_workgroup_id_x 1
.end_amdhsa_kernel
"""

def red32(P, v, t):
    for m in ("quad_perm:[1,0,3,2]", "quad_perm:[2,3,0,1]", "row_half_mirror", "row_mirror"):
        P.I(f"v_add_f32_dpp v{v}, v{v}, v{v} {m} row_mask:0xf bank_mask:0xf")
    P.I(f"v_mov_b32 v{t}, v{v}\nv_permlane16_swap_b32 v{v}, v{t}\nv_add_f32 v{v}, v{v}, v{t}")

def gen_ln():
    P = Prog(); I = P.I
    header(P, "ln_kernel"); P.L("ln_a:")
    I("s_cmp_ge_u32 s2, 256\ns_cbranch_scc1 ln_end")
    I("s_load_dwordx2 s[4:5], s[0:1], 0\ns_load_dwordx2 s[6:7], s[0:1], 88")
    I("""v_lshrrev_b32 v1, 5, v0
    s_lshl_b32 s3, s2, 3
    v_add_u32 v1, s3, v1
    v_and_b32 v2, 31, v0
    v_lshlrev_b32 v3, 10, v1
    v_lshl_add_u32 v3, v2, 4, v3
    s_waitcnt lgkmcnt(0)""")
    srd(P, 8, 4, 0, 0x200000); srd(P, 12, 6, WS_XN, SZ_XN)
    I("buffer_load_dwordx4 v[8:11], v3, s[8:11], 0 offen\nbuffer_load_dwordx4 v[12:15], v3, s[8:11], 0 offen offset:512")
    if PREF_LN:
        I("s_load_dwordx4 s[16:19], s[0:1], 8\ns_load_dwordx2 s[20:21], s[0:1], 24\ns_load_dwordx4 s[24:27], s[0:1], 48")
        I("s_lshl_b32 s3, s2, 8\nv_add_u32 v32, s3, v0\nv_lshlrev_b32 v33, 6, v32\nv_and_b32 v33, 0xffffff80, v33\ns_waitcnt lgkmcnt(0)")
        srd(P, 28, 20, 0, 0x400000)
        I("buffer_load_dword v34, v33, s[28:31], 0 offen")
        I("""s_lshr_b32 s4, s2, 5
        s_cmp_lt_u32 s4, 2
        s_cselect_b32 s32, s24, s26
        s_cselect_b32 s33, s25, s27
        s_cmp_eq_u32 s4, 4
        s_cselect_b32 s32, s16, s32
        s_cselect_b32 s33, s17, s33
        s_cmp_eq_u32 s4, 5
        s_cselect_b32 s32, s18, s32
        s_cselect_b32 s33, s19, s33
        s_and_b32 s3, s2, 63
        s_lshl_b32 s3, s3, 15
        s_and_b32 s5, s2, 31
        s_lshl_b32 s5, s5, 19
        s_cmp_lt_u32 s4, 4
        s_cselect_b32 s3, s3, s5""")
        I(f"s_mov_b32 s34, 0x1000000\ns_cselect_b32 s34, {512*3584}, s34\ns_cmp_lt_u32 s4, 6\ns_cselect_b32 s34, s34, 0\ns_mov_b32 s35, 0x00020000")
        I("v_lshlrev_b32 v35, 7, v0\nbuffer_load_dword v36, v35, s[32:35], s3 offen")
    I("""v_lshrrev_b32 v4, 4, v1
    v_lshlrev_b32 v4, 14, v4
    v_and_b32 v5, 15, v1
    v_lshl_add_u32 v4, v5, 4, v4
    v_lshrrev_b32 v5, 2, v2
    v_lshl_add_u32 v4, v5, 10, v4
    v_and_b32 v5, 1, v2
    v_lshl_add_u32 v4, v5, 9, v4
    v_bfe_u32 v5, v2, 1, 1
    v_lshl_add_u32 v4, v5, 3, v4
    v_add_u32 v5, 8192, v4""")
    I("s_waitcnt vmcnt(2)" if PREF_LN else "s_waitcnt vmcnt(0)")
    for i in range(8):
        I(f"v_lshlrev_b32 v{16+2*i}, 16, v{8+i}\nv_and_b32 v{17+2*i}, 0xffff0000, v{8+i}")
    I("v_add_f32 v6, v16, v17")
    for i in range(2, 16): I(f"v_add_f32 v6, v6, v{16+i}")
    red32(P, 6, 7)
    I(f"v_mul_f32 v6, {hex(f2u(1/512))}, v6")
    for i in range(16): I(f"v_sub_f32 v{16+i}, v{16+i}, v6")
    I("v_mul_f32 v6, v16, v16")
    for i in range(1, 16): I(f"v_fmac_f32 v6, v{16+i}, v{16+i}")
    red32(P, 6, 7)
    I(f"v_mov_b32 v7, {hex(f2u(1e-5))}\nv_fmac_f32 v7, {hex(f2u(1/512))}, v6\nv_rsq_f32 v7, v7")
    I(f"v_mul_f32 v7, {hex(f2u(CSC))}, v7")
    for i in range(16): I(f"v_mul_f32 v{16+i}, v{16+i}, v7")
    for i in range(8): I(f"v_cvt_pk_bf16_f32 v{8+i}, v{16+2*i}, v{17+2*i}")
    I("""buffer_store_dwordx2 v[8:9], v4, s[12:15], 0 offen
    buffer_store_dwordx2 v[10:11], v4, s[12:15], 0 offen offset:256
    buffer_store_dwordx2 v[12:13], v5, s[12:15], 0 offen
    buffer_store_dwordx2 v[14:15], v5, s[12:15], 0 offen offset:256""")
    P.L("ln_end:"); I("s_endpgm"); P.L("ln_z:")
    tf = lambda: [P.trace([("ln_a:", "ln_z:", 1)])]
    finish(P, tf, "ln")
    return P

def finish(P, tf, name, quiet=False):
    solve_waits(tf())
    ins = fix_hazards(P, tf)
    solve_waits(tf())
    assert not sum((find_hazards(t) for t in tf()), [])
    errs = sum((check_mem(t) for t in tf()), [])
    if errs:
        for e in errs[:30]: print("MEMERR", name, e, file=sys.stderr)
        raise SystemExit(1)
    if not quiet:
        print(f"{name}: {sum(isinstance(x, Ins) for x in P.items)} instrs, {len(ins)} nops inserted", file=sys.stderr)
    return ins

class Gaps:
    def __init__(self, n, modulo=False):
        self.n = n; self.mod = modulo
        self.sc = [[] for _ in range(n)]; self.vec = [[] for _ in range(n)]
    def ix(self, g): return g % self.n if self.mod else g
    def cost(self, g): return sum(2 if k in "EM" else 1 for k, _ in self.vec[self.ix(g)])
    def has(self, g, kinds):
        if not self.mod and not (0 <= g < self.n): return False
        return any(k in kinds for k, _ in self.vec[self.ix(g)])
    def fits(self, g, k):
        c = self.cost(g)
        if k in "EM":
            if c: return False
            if k == "E" and (self.has(g - 1, "M") or self.has(g + 1, "M")): return False
            if k == "M" and (self.has(g - 1, "E") or self.has(g + 1, "E") or self.cost(g-1) == 2 and self.has(g - 1, "V")): return False
            return True
        if c >= 2: return False
        if k == "V" and c == 1 and self.has(g + 1, "M"): return False
        return True
    def put(self, g, k, item, force=False):
        assert force or self.fits(g, k), (g, k, self.vec[self.ix(g)])
        v = self.vec[self.ix(g)]
        if k == "D":
            i = 0
            while i < len(v) and v[i][0] == "D": i += 1
            v.insert(i, (k, item))
        else: v.append((k, item))
        return g
    def first(self, g0, k, item, g1=None):
        g = g0
        lim = (g0 + self.n) if self.mod else self.n
        while g < lim and not self.fits(g, k): g += 1
        if g >= lim or (g1 is not None and g > g1):
            g = min(g1 if g1 is not None else self.n - 1, lim - 1); return self.put(max(g, min(g0, lim - 1)), k, item, force=True)
        return self.put(g, k, item)
    def scal(self, g, item):
        self.sc[self.ix(g)].append(item); return g
    def sfirst(self, g0, item, back=False):
        g = g0
        while self.sc[self.ix(g)] and (self.mod or 0 < g < self.n - 1): g += -1 if back else 1
        return self.scal(g, item)

def emit_gaps(P, mf, G, lo=0, hi=None, res=lambda it: it):
    hi = G.n if hi is None else hi
    for g in range(lo, hi):
        if mf[g] is not None: P.add(mf[g])
        for it in G.sc[g] + [it for _, it in G.vec[g]]:
            r = res(it)
            if r is None: continue
            for x in (r if isinstance(r, list) else [r]): P.add(x)

def WL(): return Ins("s_waitcnt lgkmcnt(0)", wait=dict(kind="lgkm", n=None, drop=True))
def WV(kind="vm"): return Ins("s_waitcnt vmcnt(0)", wait=dict(kind=kind, n=None, drop=True))

S_K, S_V, S_WQ, S_WG, S_WU, S_XN, S_H, S_O = 8, 12, 16, 20, 24, 28, 32, 36
S_W, S_HD, S_QB = 40, 41, 42
S_W4K = 43
S_KOFF, S_VOFF = 44, 45
S_WQO, S_GUO, S_XO = 46, 47, 48
S_M0Q, S_M0G = 49, 50
S_CNT, S_PASS, S_T0, S_T1 = 51, 52, 53, 54
S_W2K = 55
V_KV = 1
V_KA = 5
V_VA = 9
V_IDX = 17
V_L16 = 18
V_WQ = 19
V_GU = 23
V_XO = 25
V_QA = 29
V_GA = 33
V_T = 37
V_L = 32
V_CI = 48
V_P = 64
V_S = 128
V_Q = 192
A_O, A_K, A_V, A_ONE = 0, 128, 192, 224
A_X, A_G = 0, 64
LA, LK, LB, LV = 0, 16384, 81920, 98304
def kaddr(i): return ((i + 3) & 3) * 16384
NIT = 132

def att_mfmas(pbuf, do_qk, do_pv, first_pv, smf_first=False):
    mf = []
    for g in range(64):
        kb, qb, k = g >> 4, (g >> 2) & 3, g & 3
        ds = k if (g >> 2) % 2 == 0 else 3 - k
        s = V_S + (kb * 4 + qb) * 4
        c = vr(V_CI + 4 * qb) if k == 0 else vr(s)
        mf.append(Ins(f"{MF} {vr(s)}, {ar(A_K + kb*16 + ds*4)}, {vr(V_Q + (ds*4+qb)*4)}, {c}") if do_qk else None)
    pv = []
    for j in range(64):
        db, qb, k = j >> 3, (j >> 1) & 3, j & 1
        ks = k if qb % 2 == 0 else 1 - k
        o = A_O + (db * 4 + qb) * 4
        c = "0" if (first_pv and k == 0) else ar(o)
        pv.append(Ins(f"{MF} {ar(o)}, {ar(A_V + (db&3)*8 + ks*4)}, {vr(V_P + pbuf*32 + qb*8 + ks*4)}, {c}"))
    smf = [Ins(f"v_smfmac_f32_16x16x64_bf16 {vr(V_L+4*qb)}, {ar(A_ONE)}, {vr(V_P + pbuf*32 + qb*8, 8)}, v{V_IDX}") for qb in range(4)]
    seq = smf + pv
    mf += seq if do_pv else [None] * 68
    return mf
PV0 = 68

def att_table():
    G = Gaps(NIT, modulo=True)
    G.scal(62, ("vmw",)); G.scal(63, ("bar",))
    dm = [65, 66, 67, 69, 71, 73, 75, 77]
    for n in range(4): G.put(dm[n], "M", ("dmav", n))
    for n in range(4): G.put(dm[4 + n], "M", ("dmak", n))
    G.scal(64, ("m0v",)); G.scal(70, ("m0k",)); G.scal(78, ("adv",)); G.scal(79, ("adk",))
    def vread(db, gs):
        for i, g in enumerate(gs):
            G.put(g, "D", ("vrd", db, i))
    vread(2, [68, 68, 70, 70]); vread(3, [76, 76, 78, 78])
    for db in range(4, 8):
        b = PV0 + 8 * (db - 2); vread(db, [b, b + 2, b + 4, b + 5])
    vread(0, [44, 46, 48, 50]); vread(1, [52, 54, 56, 58])
    for i in range(4): G.put(116 + 2 * i, "D", ("krd", 0, i, 1))
    for i in range(4): G.put(124 + 2 * i, "D", ("krd", 1, i, 1))
    for i in range(4): G.put(0 + i, "D", ("krd", 2, i, 0))
    for i in range(4): G.put(4 + i, "D", ("krd", 3, i, 0))
    for g in (131, 15, 31, 47): G.sfirst(g, ("lgw",), back=True)
    for db in range(8): G.sfirst(PV0 + 8 * db - 1, ("lgw",), back=True)
    eg = []; g = 0
    for e in range(64):
        g = max(g, 4 * (e >> 2) + 8)
        while not G.fits(g, "E"): g += 1
        G.put(g, "E", ("exp", e, g // NIT)); eg.append(g)
    g = 0
    for c in range(32):
        g = max(g, eg[2 * c + 1] + 1)
        while not G.fits(g, "V"): g += 1
        assert g < NIT + 4 * (c >> 1), (c, g)
        G.put(g, "V", ("cvt", c, g // NIT))
    return G

def att_res(it, i, trip_stride, have):
    w = it[0]
    tg = lambda nm, t, base: (nm, t, trip_stride, base + kaddr(t))
    if w == "vmw": return WV("vmbar")
    if w == "bar": return Ins("s_barrier")
    if w == "lgw": return WL()
    if w == "m0v": return Ins(f"s_add_u32 m0, s{S_W4K}, {LV + kaddr(i+3)}") if have("dmav", i + 3) else None
    if w == "m0k": return Ins(f"s_add_u32 m0, s{S_W4K}, {LK + kaddr(i+5)}") if have("dmak", i + 5) else None
    if w == "adv": return Ins(f"s_add_u32 s{S_VOFF}, s{S_VOFF}, 16384") if have("dmav", i + 3) else None
    if w == "adk": return Ins(f"s_add_u32 s{S_KOFF}, s{S_KOFF}, 16384") if have("dmak", i + 5) else None
    if w == "dmav":
        return Ins(f"buffer_load_dwordx4 v{V_KV+it[1]}, {sr(S_V)}, s{S_VOFF} offen offset:{1024*it[1]} lds", dma=tg("V", i + 3, LV)) if have("dmav", i + 3) else None
    if w == "dmak":
        return Ins(f"buffer_load_dwordx4 v{V_KV+it[1]}, {sr(S_K)}, s{S_KOFF} offen offset:{1024*it[1]} lds", dma=tg("K", i + 5, LK)) if have("dmak", i + 5) else None
    if w == "vrd":
        db, k = it[1], it[2]; ks, half = k >> 1, k & 1
        if not have("vrd", i): return None
        return Ins(f"ds_read_b64_tr_b16 {ar(A_V + (db&3)*8 + ks*4 + half*2, 2)}, v{V_VA+db} offset:{kaddr(i) + ks*8192 + half*4096}", rd=tg("V", i, LV))
    if w == "krd":
        kb, ds, t = it[1], it[2], i + 1 + it[3]
        if not have("krd", t): return None
        return Ins(f"ds_read_b128 {ar(A_K + kb*16 + ds*4)}, v{V_KA+ds} offset:{kaddr(t) + kb*4096}", rd=tg("K", t, LK))
    if w == "exp":
        t = i + 1 - it[2]
        return Ins(f"v_exp_f32 v{V_S+it[1]}, v{V_S+it[1]}") if have("exp", t) else None
    if w == "cvt":
        c, t = it[1], i + 1 - it[2]
        if not have("exp", t): return None
        n = c >> 1; kb, qb = n >> 2, n & 3
        d = V_P + (t & 1) * 32 + qb * 8 + (kb >> 1) * 4 + (kb & 1) * 2 + (c & 1)
        return Ins(f"v_cvt_pk_bf16_f32 v{d}, v{V_S+2*c}, v{V_S+2*c+1}")
    raise ValueError(w)

def proj_step(P, t, gu, rolled, last):
    blks = ([("G", 0), ("U", 0), ("G", 1), ("U", 1), ("G", 2), ("U", 2), ("G", 3), ("U", 3)] if gu else []) + \
           [(m, ds) for ds in range(4) for m in "XY"]
    nb = len(blks); N = nb * 8
    stride = 2 if rolled else 0
    xb = A_X + (t & 1) * 32
    def acc(b, qb):
        m, i = b
        return {"G": ar(A_G + (i * 4 + qb) * 4), "U": vr(V_P + (i * 4 + qb) * 4),
                "X": vr(V_Q + (i * 4 + qb) * 4), "Y": vr(V_S + (i * 4 + qb) * 4)}[m]
    mf = []
    for bi, b in enumerate(blks):
        for j in range(8):
            qb, k = j >> 1, j & 1; ks = k if qb % 2 == 0 else 1 - k
            mf.append(Ins(f"{MF} {acc(b,qb)}, {ar(A_V + (bi&3)*8 + ks*4)}, {ar(xb + qb*8 + ks*4)}, {acc(b,qb)}"))
    G = Gaps(N)
    def rd(b, k, tt, dst):
        m, i = b; ks, half = k >> 1, k & 1
        so = (tt & 1) * 16384 if rolled else (tt & 3) * 16384 - (t & 2) * 16384 * 0
        so = (tt & 1) * 16384
        if m in "XY":
            return Ins(f"ds_read_b64_tr_b16 {ar(dst + ks*4 + half*2, 2)}, v{V_QA+i} offset:{so + ks*8192 + half*4096 + (8 if m=='Y' else 0)}", rd=("WQ", tt, stride, ("A", None)))
        return Ins(f"ds_read_b64_tr_b16 {ar(dst + ks*4 + half*2, 2)}, v{V_GA+i} offset:{so + (8192 if m=='U' else 0) + ks*4096 + half*2048}", rd=("GU", tt, stride, ("B", None)))
    toggles = []
    for bi in range(nb):
        nxt = bi + 2
        if nxt < nb:
            for k in range(4): G.put(bi * 8 + k, "D", rd(blks[nxt], k, t, A_V + (nxt & 3) * 8))
        elif not last:
            for k in range(4): G.put(bi * 8 + k, "D", rd(blks[nxt - nb], k, t + 1, A_V + (nxt & 3) * 8))
        G.scal(bi * 8 + 7, WL())
    if t & 1 and not last:
        for i in range(4):
            lastq = (nb - 8 + 2 * i + 1 - 2) * 8 + 3
            if gu:
                G.first(max(lastq + 1, 0), "V", Ins(f"v_xor_b32 v{V_QA+i}, 0x8000, v{V_QA+i}"))
                lastg = max((2 * i + 1 - 2) * 8 + 3, -1)
                G.first(lastg + 1 + 4, "V", Ins(f"v_xor_b32 v{V_GA+i}, 0x8000, v{V_GA+i}"))
        if not gu:
            for i in (1, 2, 3): G.first((2 * i - 1) * 8 + 4, "V", Ins(f"v_xor_b32 v{V_QA+i}, 0x8000, v{V_QA+i}"))
            G.first(4, "V", Ins(f"v_xor_b32 v{V_QA}, 0x8000, v{V_QA}"))
    vm_gaps = [g for g in range(N) if g % 8 >= 4]
    if not last:
        xn = A_X + ((t + 1) & 1) * 32
        g = 0
        for n in range(8):
            qb, ks = n >> 1, n & 1
            g = G.first(max(g, vm_gaps[n]), "M", Ins(f"buffer_load_dwordx4 {ar(xn + qb*8 + ks*4)}, v{V_XO+qb}, {sr(S_XN)}, s{S_XO} offen offset:{ks*1024}"))
        G.sfirst(g + 1, Ins(f"s_add_u32 s{S_XO}, s{S_XO}, 2048"))
    B = N // 2
    G.scal(B, Ins("s_barrier"))
    after = [g for g in vm_gaps if g > B + 1]
    dmas = []
    if t <= 5:
        tt = t + 3
        dmas.append(("m0", f"s_mov_b32 m0, s{S_M0Q}"))
        for n in range(4): dmas.append(("d", Ins(f"buffer_load_dwordx4 v{V_WQ+n}, {sr(S_WQ)}, s{S_WQO} offen offset:{1024*n} lds", dma=("WQ", tt, stride, ("A", None)))))
        if gu:
            dmas.append(("m0", f"s_mov_b32 m0, s{S_M0G}"))
            for n in range(2): dmas.append(("d", Ins(f"buffer_load_dwordx4 v{V_GU+n}, {sr(S_WG)}, s{S_GUO} offen offset:{1024*n} lds", dma=("GU", tt, stride, ("B", None)))))
            dmas.append(("m0", f"s_add_u32 m0, s{S_M0G}, 8192"))
            for n in range(2): dmas.append(("d", Ins(f"buffer_load_dwordx4 v{V_GU+n}, {sr(S_WU)}, s{S_GUO} offen offset:{1024*n} lds", dma=("GU", tt, stride, ("B", None)))))
        post = [f"s_add_u32 s{S_WQO}, s{S_WQO}, {64*8192}", f"s_add_u32 s{S_M0Q}, s{S_M0Q}, 16384", f"s_and_b32 s{S_M0Q}, s{S_M0Q}, 0xffff"]
        if gu: post += [f"s_add_u32 s{S_GUO}, s{S_GUO}, {64*3584}", f"s_sub_u32 s{S_T0}, s{S_M0Q}, s{S_W2K}", f"s_add_u32 s{S_M0G}, s{S_T0}, {LB}"]
    else:
        kt = t - 5
        dmas.append(("m0", f"s_add_u32 m0, s{S_W4K}, {LK + kaddr(kt)}"))
        for n in range(4): dmas.append(("d", Ins(f"buffer_load_dwordx4 v{V_KV+n}, {sr(S_K)}, s{S_KOFF} offen offset:{1024*n} lds", dma=("K", kt, 0, LK + kaddr(kt)))))
        dmas.append(("m0", f"s_add_u32 m0, s{S_W4K}, {LV + kaddr(kt)}"))
        for n in range(4): dmas.append(("d", Ins(f"buffer_load_dwordx4 v{V_KV+n}, {sr(S_V)}, s{S_VOFF} offen offset:{1024*n} lds", dma=("V", kt, 0, LV + kaddr(kt)))))
        post = [f"s_add_u32 s{S_KOFF}, s{S_KOFF}, 16384", f"s_add_u32 s{S_VOFF}, s{S_VOFF}, 16384"]
    ai = 0; lastg = B
    for k, d in dmas:
        if k == "m0":
            if after[ai] - 1 <= lastg or G.sc[after[ai] - 1]: ai += 1
            while after[ai] - 1 <= lastg or G.sc[after[ai] - 1]: ai += 1
            G.scal(after[ai] - 1, Ins(d))
        else:
            while not G.fits(after[ai], "M"): ai += 1
            lastg = G.put(after[ai], "M", d); ai += 1
    g = lastg + 1
    for s in post: g = G.sfirst(g, Ins(s)) + 1
    if not last: G.sfirst(N - 2, WV("vmbar"), back=True)
    else: pass
    return mf, G, blks, acc

def gen_main():
    P = Prog(); I = P.I
    header(P, "main_kernel"); P.L("m_a:")
    I("s_cmp_ge_u32 s2, 256\ns_cbranch_scc1 m_end")
    ST = Stamper(P, 1); ST(0)
    I("""s_load_dwordx4 s[60:63], s[0:1], 8
    s_load_dwordx2 s[64:65], s[0:1], 24
    s_load_dwordx4 s[68:71], s[0:1], 48
    s_load_dwordx2 s[66:67], s[0:1], 88""")
    I(f"""v_lshrrev_b32 v1, 6, v0
    v_and_b32 v0, 63, v0
    s_and_b32 s3, s2, 7
    v_readfirstlane_b32 s{S_W}, v1
    s_lshr_b32 s4, s2, 3
    s_and_b32 s5, s4, 3
    s_lshl_b32 s3, s3, 2
    s_add_u32 s{S_HD}, s3, s5
    s_lshr_b32 s{S_QB}, s4, 2
    s_lshl_b32 s{S_W4K}, s{S_W}, 12
    s_lshl_b32 s{S_W2K}, s{S_W}, 11
    v_lshlrev_b32 v{V_L16}, 4, v0""")
    T = V_T
    I(f"v_lshrrev_b32 v{T}, 4, v0\nv_and_b32 v{T+1}, 15, v0")
    I(f"v_lshlrev_b32 v{T+2}, 1, v{T}\nv_xor_b32 v{T+2}, v{T+2}, v{T+1}")
    for n, fx in enumerate((0, 8, 9, 1)):
        I(f"""v_xor_b32 v{T+3}, {fx}, v{T+2}
        v_lshlrev_b32 v{T+3}, 4, v{T+3}
        v_lshl_add_u32 v{V_KV+n}, v{T}, 8, v{T+3}
        v_lshl_add_u32 v{V_WQ+n}, v{T}, 13, v{T+3}""")
        if n: I(f"v_add_u32 v{V_WQ+n}, {n*(4*8192-1024)}, v{V_WQ+n}")
    I("s_waitcnt lgkmcnt(0)")
    I(f"s_lshl_b32 s3, s{S_HD}, 8\ns_sub_u32 s4, 0x400000, s3")
    srd(P, S_WQ, 64, "s3", "s4")
    srd(P, S_XN, 66, WS_XN, SZ_XN)
    I(f"s_lshl_b32 s3, s{S_HD}, 7\ns_sub_u32 s4, {512*3584}, s3")
    srd(P, S_WG, 68, "s3", "s4"); srd(P, S_WU, 70, "s3", "s4")
    I(f"s_mul_i32 s{S_WQO}, s{S_W}, {16*8192}\ns_mul_i32 s{S_GUO}, s{S_W}, {16*3584}")
    I(f"""v_lshrrev_b32 v{T+3}, 3, v0
    v_and_b32 v{T+4}, 7, v0
    v_and_b32 v{T+5}, 6, v{T+3}
    v_xor_b32 v{T+4}, v{T+4}, v{T+5}
    v_lshlrev_b32 v{T+4}, 4, v{T+4}
    v_mul_u32_u24 v{T+3}, 3584, v{T+3}
    v_add_u32 v{V_GU}, v{T+3}, v{T+4}
    v_add_u32 v{V_GU+1}, {8*3584-1024}, v{V_GU}""")
    for qb in range(4): I(f"v_add_u32 v{V_XO+qb}, {qb*X_RB}, v{V_L16}")
    I(f"s_lshl_b32 s3, s{S_QB}, 2\ns_add_u32 s3, s3, s{S_W}\ns_lshl_b32 s{S_XO}, s3, 16")
    I(f"s_cmp_ge_u32 s{S_HD}, 28\ns_cbranch_scc1 mq_pre")

    def w_dma(tt, gu):
        I(f"s_add_u32 m0, s{S_W4K}, {LA + tt*16384}\ns_nop 0")
        for n in range(4): I(f"buffer_load_dwordx4 v{V_WQ+n}, {sr(S_WQ)}, s{S_WQO} offen offset:{1024*n} lds", dma=("WQ", tt, 0, ("A", None)))
        I(f"s_add_u32 s{S_WQO}, s{S_WQO}, {64*8192}")
        if gu:
            for m, srdn in ((0, S_WG), (1, S_WU)):
                I(f"s_add_u32 m0, s{S_W2K}, {LB + tt*16384 + m*8192}\ns_nop 0")
                for n in range(2): I(f"buffer_load_dwordx4 v{V_GU+n}, {sr(srdn)}, s{S_GUO} offen offset:{1024*n} lds", dma=("GU", tt, 0, ("B", None)))
            I(f"s_add_u32 s{S_GUO}, s{S_GUO}, {64*3584}")
    def kv_dma(kt, k=True, v=True):
        if k:
            I(f"s_add_u32 m0, s{S_W4K}, {LK + kaddr(kt)}\ns_nop 0")
            for n in range(4): I(f"buffer_load_dwordx4 v{V_KV+n}, {sr(S_K)}, s{S_KOFF} offen offset:{1024*n} lds", dma=("K", kt, 0, LK + kaddr(kt)))
            I(f"s_add_u32 s{S_KOFF}, s{S_KOFF}, 16384")
        if v:
            I(f"s_add_u32 m0, s{S_W4K}, {LV + kaddr(kt)}\ns_nop 0")
            for n in range(4): I(f"buffer_load_dwordx4 v{V_KV+n}, {sr(S_V)}, s{S_VOFF} offen offset:{1024*n} lds", dma=("V", kt, 0, LV + kaddr(kt)))
            I(f"s_add_u32 s{S_VOFF}, s{S_VOFF}, 16384")

    def proj_phase(gu, pre):
        P.L(f"{pre}_pre:")
        w_dma(0, gu)
        for n in range(8):
            qb, ks = n >> 1, n & 1
            I(f"buffer_load_dwordx4 {ar(A_X + qb*8 + ks*4)}, v{V_XO+qb}, {sr(S_XN)}, s{S_XO} offen offset:{ks*1024}")
        I(f"s_add_u32 s{S_XO}, s{S_XO}, 2048")
        w_dma(1, gu); w_dma(2, gu)
        I(f"s_lshl_b32 s3, s{S_HD}, 19")
        srd(P, S_K, 60, "s3", 0x80000); srd(P, S_V, 62, "s3", 0x80000)
        I(f"s_mov_b32 s{S_KOFF}, s{S_W4K}\ns_mov_b32 s{S_VOFF}, s{S_W4K}")
        kv_dma(0)
        srd(P, S_H, 66, WS_H, SZ_H); srd(P, S_O, 66, WS_O, SZ_O)
        I(f"s_add_u32 s{S_M0Q}, s{S_W4K}, {3*16384}\ns_add_u32 s{S_M0G}, s{S_W2K}, {LB + 3*16384}\ns_mov_b32 s{S_PASS}, 0")
        I(f"""v_and_b32 v{T+2}, 7, v{T+1}
        v_lshlrev_b32 v{T+2}, 1, v{T+2}
        v_lshrrev_b32 v{T+3}, 3, v{T+1}
        v_mul_u32_u24 v{T+3}, 9, v{T+3}
        v_xor_b32 v{T+2}, v{T+2}, v{T+3}
        v_xor_b32 v{T+2}, v{T+2}, v{T}
        v_lshlrev_b32 v{T+3}, 8, v{T+1}
        v_add_u32 v{T+3}, {LK}, v{T+3}""")
        for ds in range(4):
            I(f"v_xor_b32 v{T+4}, {4*ds}, v{T+2}\nv_lshl_add_u32 v{V_KA+ds}, v{T+4}, 4, v{T+3}")
        I(f"""v_lshrrev_b32 v{T+2}, 2, v0
        v_and_b32 v{T+3}, 7, v{T+2}
        v_lshlrev_b32 v{T+3}, 1, v{T+3}
        v_lshrrev_b32 v{T+4}, 3, v{T+2}
        v_mul_u32_u24 v{T+4}, 9, v{T+4}
        v_xor_b32 v{T+3}, v{T+3}, v{T+4}
        v_and_b32 v{T+4}, 3, v0
        v_xor_b32 v{T+5}, v{T+3}, v{T+4}
        v_lshlrev_b32 v{T+6}, 8, v{T+2}""")
        for ds in range(4):
            I(f"v_xor_b32 v{T+7}, {4*ds}, v{T+5}\nv_lshl_add_u32 v{V_QA+ds}, v{T+7}, 4, v{T+6}")
        I(f"""v_bfe_u32 v{T+4}, v0, 1, 1
        v_xor_b32 v{T+5}, v{T+3}, v{T+4}
        v_and_b32 v{T+7}, 1, v0
        v_lshl_add_u32 v{T+6}, v{T+7}, 3, v{T+6}
        v_add_u32 v{T+6}, {LV}, v{T+6}""")
        for db in range(8):
            I(f"v_xor_b32 v{T+8}, {2*db}, v{T+5}\nv_lshl_add_u32 v{V_VA+db}, v{T+8}, 4, v{T+6}")
        if gu:
            I(f"""v_and_b32 v{T+3}, 6, v{T+2}
            v_xor_b32 v{T+5}, v{T+3}, v{T+4}
            v_lshlrev_b32 v{T+6}, 7, v{T+2}
            v_lshl_add_u32 v{T+6}, v{T+7}, 3, v{T+6}
            v_add_u32 v{T+6}, {LB}, v{T+6}""")
            for fb in range(4):
                I(f"v_xor_b32 v{T+8}, {2*fb}, v{T+5}\nv_lshl_add_u32 v{V_GA+fb}, v{T+8}, 4, v{T+6}")
        I(f"""v_and_b32 v{T+3}, 1, v0
        v_mov_b32 v{T+4}, 0xaaaaaaaa
        v_mul_lo_u32 v{T+3}, v{T+3}, v{T+4}
        v_add_u32 v{V_IDX}, 0x44444444, v{T+3}
        v_mov_b32 v{T+4}, 0x3f803f80""")
        for i in range(4): I(f"v_accvgpr_write_b32 a{A_ONE+i}, v{T+4}")
        for i in range(16): I(f"v_mov_b32 v{V_CI+i}, 0")
        for i in range(128): I(f"v_mov_b32 v{V_S+i}, 0")
        if gu:
            for i in range(64): I(f"v_mov_b32 v{V_P+i}, 0\nv_accvgpr_write_b32 a{A_G+i}, 0")
        ST(1)
        P.add(WV("vmbar")); I("s_barrier")
        ST(2)
        mf, G, blks, acc = proj_step(P, 0, gu, True, False)
        for bi in range(2):
            m, i = blks[bi]
            for k in range(4):
                ks, half = k >> 1, k & 1
                if m in "XY": I(f"ds_read_b64_tr_b16 {ar(A_V + bi*8 + ks*4 + half*2, 2)}, v{V_QA+i} offset:{ks*8192 + half*4096 + (8 if m=='Y' else 0)}", rd=("WQ", 0, 0, ("A", None)))
                else: I(f"ds_read_b64_tr_b16 {ar(A_V + bi*8 + ks*4 + half*2, 2)}, v{V_GA+i} offset:{(8192 if m=='U' else 0) + ks*4096 + half*2048}", rd=("GU", 0, 0, ("B", None)))
        I(f"s_mov_b32 s{S_CNT}, 0")
        P.add(WL())
        P.L(f".p2align 3\n{pre}_loop:"); P.L(f"{pre}_loop_:")
        emit_gaps(P, mf, G)
        mf, G, blks, acc = proj_step(P, 1, gu, True, False)
        G.sfirst(G.n - 6, Ins(f"s_add_u32 s{S_CNT}, s{S_CNT}, 1"), back=True)
        G.sfirst(G.n - 3, Ins(f"s_cmp_lt_u32 s{S_CNT}, 3"), back=True)
        emit_gaps(P, mf, G)
        I(f"s_cbranch_scc1 {pre}_loop")
        P.L(f"{pre}_tail:")
        mf, G, blks, acc = proj_step(P, 6, gu, False, False)
        emit_gaps(P, mf, G)
        mf, G, blks, acc = proj_step(P, 7, gu, False, True)
        N = G.n
        G.sfirst(N // 2 - 1, WV("vmbar"), back=True)
        for i in range(8):
            kb, ds = i >> 2, i & 3
            G.first(N - 16 + 8 * kb + ds, "D", Ins(f"ds_read_b128 {ar(A_K + kb*16 + ds*4)}, v{V_KA+ds} offset:{kaddr(0) + kb*4096}", rd=("K", 0, 0, LK + kaddr(0))))
        late = []
        if gu:
            g = 0
            G.sfirst(1, Ins(f"s_lshl_b32 s{S_T0}, s{S_QB}, 2")); G.sfirst(2, Ins(f"s_add_u32 s{S_T0}, s{S_T0}, s{S_W}"))
            G.sfirst(3, Ins(f"s_mul_i32 s{S_T0}, s{S_T0}, {4*H_RB}")); G.sfirst(4, Ins(f"s_lshl_b32 s{S_T1}, s{S_HD}, 11"))
            G.sfirst(5, Ins(f"s_add_u32 s{S_T0}, s{S_T0}, s{S_T1}"))
            for qb in range(4): G.first(4 + qb, "V", Ins(f"v_add_u32 v{V_XO+qb}, {qb*H_RB}, v{V_L16}"))
            for fb in range(4):
                for qb in range(4):
                    rdy = (2 * fb + 1) * 8 + 2 * qb + 1 + 5
                    g = max(g, rdy)
                    tmp = V_T + 3 + ((fb * 4 + qb) & 1) * 4
                    u = V_P + (fb * 4 + qb) * 4
                    dst = V_P + ((fb & 2) * 4 + qb) * 4 + (fb & 1) * 2
                    for r in range(4): g = G.first(g, "V", Ins(f"v_accvgpr_read_b32 v{tmp+r}, a{A_G + (fb*4+qb)*4 + r}"))
                    for r in range(4): g = G.first(g, "V", Ins(f"v_mul_f32 v{tmp+r}, v{tmp+r}, v{u+r}"))
                    for r in range(2): g = G.first(g, "V", Ins(f"v_cvt_pk_bf16_f32 v{dst+r}, v{tmp+2*r}, v{tmp+2*r+1}"))
                    if fb & 1:
                        late.append(Ins(f"buffer_store_dwordx4 {vr(V_P + ((fb&2)*4+qb)*4)}, v{V_XO+qb}, {sr(S_H)}, s{S_T0} offen offset:{(fb>>1)*1024}"))
        q0 = N - 64; g2 = 0; tailq = []
        for ds in range(4):
            for qb in range(4):
                x = V_Q + (ds * 4 + qb) * 4; y = V_S + (ds * 4 + qb) * 4
                rdy = q0 + (2 * ds + 1) * 8 + 2 * qb + 1 + 5
                for d, s in ((x, x), (x + 1, x + 2), (x + 2, y), (x + 3, y + 2)):
                    ins = Ins(f"v_cvt_pk_bf16_f32 v{d}, v{s}, v{s+1}")
                    gg = max(g2, rdy)
                    while gg < N and not G.fits(gg, "V"): gg += 1
                    if gg < N and not tailq: g2 = G.put(gg, "V", ins)
                    else: tailq.append(ins)
        emit_gaps(P, mf, G)
        for x in late + tailq: P.add(x)
        for i in range(16): I(f"v_mov_b32 v{V_L+i}, 0")
        P.L(f"{pre}_done:")

    proj_phase(True, "mg")
    P.L("att_pro:")
    ST(3)
    TB = att_table()
    def iteration(i, stride, have, do_qk=True, do_pv=True, first_pv=False, lo=0, hi=NIT, extra=None):
        mf = att_mfmas(i & 1, do_qk, do_pv, first_pv)
        def res(it):
            r = att_res(it, i, stride, have)
            if extra and it in extra: return extra[it] + ([r] if r else [])
            return r
        emit_gaps(P, mf, TB, lo, hi, res)
    def prologue():
        have = lambda k, t: t >= 0 and not (k == "dmav" and t == 2)
        k3 = [Ins(f"s_add_u32 m0, s{S_W4K}, {LK + kaddr(3)}"), Ins("s_nop 0")] + \
             [Ins(f"buffer_load_dwordx4 v{V_KV+n}, {sr(S_K)}, s{S_KOFF} offen offset:{1024*n} lds", dma=("K", 3, 0, LK + kaddr(3))) for n in range(4)] + \
             [Ins(f"s_add_u32 s{S_KOFF}, s{S_KOFF}, 16384")]
        P.add(WL())
        iteration(-1, 0, have, do_pv=False, extra={("m0v",): k3})
    prologue()
    if PREF_POST:
        I("s_load_dwordx2 s[56:57], s[0:1], 32\ns_load_dwordx2 s[58:59], s[0:1], 64\ns_waitcnt lgkmcnt(0)")
        srd(P, 60, 56, 0, 0x400000); srd(P, 64, 58, 0, 1792*1024)
        I(f"s_lshl_b32 s56, s2, 2\ns_add_u32 s56, s56, s{S_W}\ns_lshl_b32 s57, s56, 12\ns_lshl_b32 s56, s56, 11\nv_lshlrev_b32 v19, 2, v{V_L16}\nv_lshlrev_b32 v21, 1, v{V_L16}")
        I("buffer_load_dword v20, v19, s[60:63], s57 offen\nbuffer_load_dword v22, v21, s[64:67], s56 offen")
    P.L("att_it0:")
    ST(4)
    allh = lambda k, t: True
    iteration(0, 0, allh, first_pv=True)
    I(f"s_mov_b32 s{S_CNT}, 0\ns_branch att_l1")
    P.L("att_j:")
    P.L(".p2align 3\natt_loop:"); P.L("att_l_:")
    iteration(-1, 4, allh); iteration(0, 4, allh)
    P.L("att_l1:")
    iteration(1, 4, allh)
    iteration(2, 4, allh, extra={("adv",): [Ins(f"s_add_u32 s{S_CNT}, s{S_CNT}, 1")]}, hi=NIT)
    I(f"s_cmp_lt_u32 s{S_CNT}, 8\ns_cbranch_scc1 att_loop")
    P.L("att_tail:")
    ST(5)
    have = lambda k, t: t <= 31
    iteration(31, 0, have, do_qk=False)
    P.L("att_epi:")
    ST(6)
    T = V_S
    I(f"s_lshl_b32 s{S_T0}, s{S_QB}, 2\ns_add_u32 s{S_T0}, s{S_T0}, s{S_W}\ns_lshl_b32 s{S_T0}, s{S_T0}, 19\ns_lshl_b32 s{S_T1}, s{S_HD}, 12\ns_add_u32 s{S_T0}, s{S_T0}, s{S_T1}")
    lo, hi_ = hex(f2u(2.0 ** -24)), hex(f2u(2.0 ** 48))
    I(f"s_mov_b32 s56, {lo}\ns_mov_b32 s57, {hi_}\ns_mov_b64 s[58:59], -1")
    for qb in range(4):
        I(f"v_add_f32 v{T+qb}, v{V_L+4*qb}, v{V_L+4*qb+1}")
        I(f"v_cmp_le_f32 vcc, s56, v{T+qb}\ns_and_b64 s[58:59], s[58:59], vcc\nv_cmp_ge_f32 vcc, s57, v{T+qb}\ns_and_b64 s[58:59], s[58:59], vcc")
        I(f"v_rcp_f32 v{T+4+2*qb}, v{T+qb}\nv_add_u32 v{T+12+qb}, {qb*O_RB}, v{V_L16}")
    for i in range(8): I(f"v_mov_b32 v{T+16+i}, 0")
    n = 0
    for t in range(4):
        for qb in range(4):
            tmp = T + 24 + (n % 3) * 12; n += 1
            for hb in range(2):
                o = A_O + ((2 * t + hb) * 4 + qb) * 4
                for r in range(4): I(f"v_accvgpr_read_b32 v{tmp+4*hb+r}, a{o+r}")
            for r in range(4): I(f"v_pk_mul_f32 {vr(tmp+2*r,2)}, {vr(tmp+2*r,2)}, {vr(T+4+2*qb,2)} op_sel_hi:[1,0]")
            for r in range(4): I(f"v_cvt_pk_bf16_f32 v{tmp+8+r}, v{tmp+2*r}, v{tmp+2*r+1}")
            I(f"buffer_store_dwordx4 {vr(tmp+8)}, v{T+12+qb}, {sr(S_O)}, s{S_T0} offen offset:{t*1024}")
            I(f"{MF} {vr(T+20)}, {vr(T+16)}, {vr(tmp+8)}, {vr(T+20)}")
    I(f"s_cmp_lg_u32 s{S_PASS}, 0\ns_cbranch_scc1 m_fin")
    P.L("att_chk:")
    I(f"v_cmp_o_f32 vcc, v{T+20}, v{T+20}\ns_and_b64 s[58:59], s[58:59], vcc\ns_cmp_eq_u64 s[58:59], -1\ns_cselect_b32 s56, 0, 1")
    I(f"v_mov_b32 v{T}, s56\nv_mov_b32 v{T+1}, s{S_W}\nv_lshlrev_b32 v{T+1}, 2, v{T+1}\nds_write_b32 v{T+1}, v{T}\nv_mov_b32 v{T+1}, 0")
    I(f"s_waitcnt lgkmcnt(0)\ns_barrier\nds_read_b128 {vr(T+4)}, v{T+1}\ns_waitcnt lgkmcnt(0)")
    I(f"v_or_b32 v{T+4}, v{T+4}, v{T+5}\nv_or3_b32 v{T+4}, v{T+4}, v{T+6}, v{T+7}\nv_readfirstlane_b32 s56, v{T+4}\ns_cmp_eq_u32 s56, 0\ns_cbranch_scc1 m_fin")
    P.L("fb_a:")
    MX = V_L
    I(f"s_mov_b32 s{S_PASS}, 1\ns_mov_b32 s{S_KOFF}, s{S_W4K}\ns_mov_b32 s{S_CNT}, 0\ns_waitcnt vmcnt(0)")
    for qb in range(4): I(f"v_mov_b32 v{MX+qb}, 0xff800000")
    P.L("fb_loop:")
    I(f"s_barrier\ns_add_u32 m0, s{S_W4K}, {LK}\ns_nop 0")
    for n in range(4): I(f"buffer_load_dwordx4 v{V_KV+n}, {sr(S_K)}, s{S_KOFF} offen offset:{1024*n} lds", dma=("FK", 0, 1, LK))
    I(f"s_add_u32 s{S_KOFF}, s{S_KOFF}, 16384\ns_waitcnt vmcnt(0)\ns_barrier")
    for kb in range(4):
        for ds in range(4): I(f"ds_read_b128 {ar(A_K + kb*16 + ds*4)}, v{V_KA+ds} offset:{kb*4096}", rd=("FK", 0, 1, LK))
        I("s_waitcnt lgkmcnt(0)")
    for kb in range(4):
        for qb in range(4):
            s = V_S + (kb * 4 + qb) * 4
            for ds in range(4): I(f"{MF} {vr(s)}, {ar(A_K + kb*16 + ds*4)}, {vr(V_Q + (ds*4+qb)*4)}, {'0' if ds==0 else vr(s)}")
    for kb in range(4):
        for qb in range(4):
            s = V_S + (kb * 4 + qb) * 4
            I(f"v_max3_f32 v{MX+qb}, v{MX+qb}, v{s}, v{s+1}\nv_max3_f32 v{MX+qb}, v{MX+qb}, v{s+2}, v{s+3}")
    I(f"s_add_u32 s{S_CNT}, s{S_CNT}, 1\ns_cmp_lt_u32 s{S_CNT}, 32\ns_cbranch_scc1 fb_loop")
    P.L("fb_b:")
    for qb in range(4):
        m, t = MX + qb, MX + 4 + qb
        I(f"v_mov_b32 v{t}, v{m}\nv_permlane32_swap_b32 v{m}, v{t}\nv_max_f32 v{m}, v{m}, v{t}")
        I(f"v_mov_b32 v{t}, v{m}\nv_permlane16_swap_b32 v{m}, v{t}\nv_max_f32 v{m}, v{m}, v{t}")
        for r in range(4): I(f"v_sub_f32 v{V_CI+4*qb+r}, 0, v{m}")
    for i in range(16): I(f"v_mov_b32 v{V_L+i}, 0")
    I(f"s_mov_b32 s{S_KOFF}, s{S_W4K}\ns_mov_b32 s{S_VOFF}, s{S_W4K}\ns_barrier")
    for kt in range(3): kv_dma(kt)
    I("s_waitcnt vmcnt(0)\ns_barrier")
    for i in range(8):
        kb, ds = i >> 2, i & 3
        I(f"ds_read_b128 {ar(A_K + kb*16 + ds*4)}, v{V_KA+ds} offset:{kaddr(0) + kb*4096}", rd=("K", 0, 0, LK + kaddr(0)))
    I("s_waitcnt lgkmcnt(0)\ns_branch att_pro")
    P.L("fb_z:")
    T = V_T
    proj_phase(False, "mq")
    I("s_branch att_pro")
    P.L("mq_z:")
    P.L("m_fin:")
    if DIAG:
        ST(7); I("s_waitcnt vmcnt(0)"); ST(8); ST.dump(66, S_W)
    P.L("m_end:"); I("s_endpgm"); P.L("m_z:")

    att = [("att_pro:", "att_j:", 1), ("att_l1:", "att_tail:", 1)]
    def tf():
        body = P.seg("att_l_:", "att_tail:")
        full = []
        for t in range(1, 8): full += [(x, t) for x in body]
        A = P.trace(att) + full + P.trace([("att_tail:", "att_chk:", 1)])
        out = []
        for pre, end in (("mg", "mg_done:"), ("mq", "mq_z:")):
            tr = P.trace([("m_a:", "mg_pre:", 1), (f"{pre}_pre:", f"{pre}_loop_:", 1), (f"{pre}_loop_:", f"{pre}_tail:", 3), (f"{pre}_tail:", end, 1)]) + A
            out.append(tr + P.trace([("att_chk:", "fb_a:", 1), ("m_fin:", "m_z:", 1)]))
        out.append(out[0][:-len(P.seg("m_fin:", "m_z:"))] + P.trace([("fb_a:", "fb_loop:", 1), ("fb_loop:", "fb_b:", 3), ("fb_b:", "fb_z:", 1)]) + A)
        return out
    finish(P, tf, "main")
    return P

def gen_post():
    P = Prog(); I = P.I
    header(P, "post_kernel"); P.L("p_a:")
    S_WD, S_WO, S_HH, S_OO, S_X, S_OUT = 8, 12, 16, 20, 24, 28
    SW, SRT, SNT, SM0, SWO, SBO = 32, 33, 34, 35, 36, 37
    V_W, V_BH, V_BO, V_A, VL, T = 1, 5, 9, 13, 17, 18
    ACC_D, ACC_S = 64, 128
    A_B, A_A = 0, 128
    I("s_cmp_ge_u32 s2, 256\ns_cbranch_scc1 p_end")
    ST = Stamper(P, 2); ST(0)
    I("""s_load_dwordx2 s[60:61], s[0:1], 0
    s_load_dwordx2 s[62:63], s[0:1], 32
    s_load_dwordx4 s[64:67], s[0:1], 64
    s_load_dwordx2 s[68:69], s[0:1], 88""")
    I(f"""v_lshrrev_b32 v1, 6, v0
    v_and_b32 v0, 63, v0
    s_and_b32 s3, s2, 7
    v_readfirstlane_b32 s{SW}, v1
    s_lshr_b32 s4, s2, 3
    s_and_b32 s5, s4, 3
    s_lshl_b32 s3, s3, 2
    s_add_u32 s{SRT}, s3, s5
    s_lshr_b32 s{SNT}, s4, 2
    v_lshlrev_b32 v{VL}, 4, v0
    v_lshrrev_b32 v{T}, 3, v0
    v_and_b32 v{T+1}, 7, v0
    v_and_b32 v{T+2}, 6, v{T}
    v_xor_b32 v{T+1}, v{T+1}, v{T+2}
    v_lshlrev_b32 v{T+1}, 4, v{T+1}
    v_lshl_add_u32 v{V_W}, v{T}, 10, v{T+1}""")
    for n in range(1, 4): I(f"v_add_u32 v{V_W+n}, {n*(8192-1024)}, v{V_W}")
    for qb in range(4):
        I(f"s_xor_b32 s3, s{SW}, {qb}\ns_mul_i32 s4, s3, {H_RB}\ns_lshl_b32 s5, s3, 17\nv_add_u32 v{V_BH+qb}, s4, v{VL}\nv_add_u32 v{V_BO+qb}, s5, v{VL}")
    I("s_waitcnt lgkmcnt(0)")
    I(f"s_lshl_b32 s3, s{SNT}, 7\ns_sub_u32 s4, {1792*1024}, s3\ns_sub_u32 s5, {4096*1024}, s3")
    srd(P, S_WD, 64, "s3", "s4"); srd(P, S_HH, 68, WS_H, SZ_H)
    srd(P, S_WO, 62, "s3", "s5"); srd(P, S_OO, 68, WS_O, SZ_O)
    I(f"s_lshl_b32 s{SM0}, s{SW}, 15")
    steps = [("d", i) for i in range(7)] + [("s", i) for i in range(16)]
    def issue(n):
        kind, i = steps[n]; slot = n & 3; out = []
        if i == 0:
            if kind == "d":
                out += [Ins(f"s_mul_i32 s{SWO}, s{SW}, {7*65536}"), Ins(f"s_mul_i32 s{SBO}, s{SRT}, {4*H_RB}"), Ins(f"s_mul_i32 s3, s{SW}, {7*2048}"), Ins(f"s_add_u32 s{SBO}, s{SBO}, s3")]
            else:
                out += [Ins(f"s_lshl_b32 s{SWO}, s{SW}, 20"), Ins(f"s_lshl_b32 s{SBO}, s{SRT}, 19"), Ins(f"s_lshl_b32 s3, s{SW}, 15"), Ins(f"s_add_u32 s{SBO}, s{SBO}, s3")]
        sw, sb, vb = (S_WD, S_HH, V_BH) if kind == "d" else (S_WO, S_OO, V_BO)
        for hf in range(2):
            out += [Ins(f"s_add_u32 m0, s{SM0}, {slot*8192 + hf*4096}")]
            ld = [Ins(f"buffer_load_dwordx4 {ar(A_B + slot*32 + qb*8 + hf*4)}, v{vb+qb}, {sr(sb)}, s{SBO} offen offset:{hf*1024}") for qb in range(4)]
            dm = [Ins(f"buffer_load_dwordx4 v{V_W+k}, {sr(sw)}, s{SWO} offen offset:{k*1024} lds", dma=("p_W", n, 0, ("P", slot))) for k in range(4)]
            out += [ld[0]] + dm + ld[1:] + [Ins(f"s_add_u32 s{SWO}, s{SWO}, 32768")]
        out += [Ins(f"s_add_u32 s{SBO}, s{SBO}, 2048")]
        return out
    for n in range(3):
        for x in issue(n): P.add(x)
    srd(P, S_X, 60, 0, 0x200000); srd(P, S_OUT, 66, 0, 0x200000)
    I(f"""v_lshrrev_b32 v{T+2}, 2, v0
    v_and_b32 v{T+3}, 6, v{T+2}
    v_bfe_u32 v{T+4}, v0, 1, 1
    v_xor_b32 v{T+5}, v{T+3}, v{T+4}
    v_and_b32 v{T+7}, 1, v0
    v_lshlrev_b32 v{T+6}, 7, v{T+2}
    v_lshl_add_u32 v{T+6}, v{T+7}, 3, v{T+6}
    v_add_u32 v{T+6}, s{SM0}, v{T+6}""")
    for nb in range(4): I(f"v_xor_b32 v{T+8}, {2*nb}, v{T+5}\nv_lshl_add_u32 v{V_A+nb}, v{T+8}, 4, v{T+6}")
    def rd(n, nb, k):
        ks, half = k >> 1, k & 1
        return Ins(f"ds_read_b64_tr_b16 {ar(A_A + nb*8 + ks*4 + half*2, 2)}, v{V_A+nb} offset:{(n&3)*8192 + ks*4096 + half*2048}", rd=("p_W", n, 0, ("P", n & 3)))
    ST(1)
    P.add(WV())
    ST(2)
    for nb in range(2):
        for k in range(4): P.add(rd(0, nb, k))
    P.add(WL())
    for n, (kind, i) in enumerate(steps):
        acc = ACC_D if kind == "d" else ACC_S
        mf = []
        for j in range(32):
            nb, qb, k = j >> 3, (j >> 1) & 3, j & 1; ks = k if qb % 2 == 0 else 1 - k
            a = vr(acc + (nb * 4 + qb) * 4)
            mf.append(Ins(f"{MF} {a}, {ar(A_A + nb*8 + ks*4)}, {ar(A_B + (n&3)*32 + qb*8 + ks*4)}, {'0' if (i==0 and k==0) else a}"))
        G = Gaps(32)
        for nb in range(4):
            if nb < 2:
                for k in range(4): G.put(nb * 8 + k // 2, "D", rd(n, nb + 2, k))
            elif n + 1 < len(steps):
                for k in range(4): G.put(nb * 8 + k // 2, "D", rd(n + 1, nb - 2, k))
            G.scal(nb * 8 + 7, WL())
        if n + 1 < len(steps): G.scal(15, WV())
        if n + 3 < len(steps):
            free = [g for g in range(32) if g % 8 >= 2]
            fi = 0
            for x in issue(n + 3):
                if x.kind == "vmem": G.put(free[fi], "M", x, force=True); fi += 1
                else: G.scal(free[fi], x)
        emit_gaps(P, mf, G)
        if n == 6: ST(3)
        if n == 14: ST(4)
    ST(5)
    I(f"""s_lshl_b32 s3, s{SRT}, 2
    s_add_u32 s3, s3, s{SW}
    s_lshl_b32 s3, s3, 14
    s_lshl_b32 s4, s{SNT}, 7
    s_add_u32 s3, s3, s4
    v_and_b32 v{T}, 15, v0
    v_lshrrev_b32 v{T+1}, 4, v0
    v_lshlrev_b32 v{T+1}, 3, v{T+1}
    v_lshl_add_u32 v{T}, v{T}, 10, v{T+1}""")
    XR = 32
    for nb in range(4): I(f"buffer_load_dwordx2 {vr(XR+2*nb,2)}, v{T}, {sr(S_X)}, s3 offen offset:{32*nb}")
    I("s_barrier")
    for qb in range(1, 4):
        I(f"s_xor_b32 s4, s{SW}, {qb}\ns_mul_i32 s4, s4, 24576\ns_add_u32 s4, s4, {(qb-1)*8192}\nv_add_u32 v{T+1+qb}, s4, v{VL}")
        for m, acc in enumerate((ACC_D, ACC_S)):
            for nb in range(4): I(f"ds_write_b128 v{T+1+qb}, {vr(acc + (nb*4+qb)*4)} offset:{(m*4+nb)*1024}")
    I(f"s_mul_i32 s4, s{SW}, 24576\nv_add_u32 v{T+1}, s4, v{VL}\ns_waitcnt lgkmcnt(0)\ns_barrier")
    for j in range(3):
        for m, acc in enumerate((ACC_D, ACC_S)):
            for nb in range(4): I(f"ds_read_b128 {vr(acc + (nb*4+1+j)*4)}, v{T+1} offset:{j*8192 + (m*4+nb)*1024}")
        I("s_waitcnt lgkmcnt(0)")
    for acc in (ACC_D, ACC_S):
        for nb in range(4):
            b = acc + nb * 16
            for r in range(4): I(f"v_add_f32 v{b+r}, v{b+r}, v{b+4+r}\nv_add_f32 v{b+8+r}, v{b+8+r}, v{b+12+r}")
            for r in range(4): I(f"v_add_f32 v{b+r}, v{b+r}, v{b+8+r}")
    I(f"s_mov_b32 s4, {hex(f2u(1/(CSC*CSC)))}\ns_mov_b32 s5, {hex(f2u(-math.log2(math.e)))}\ns_waitcnt vmcnt(0)")
    for nb in range(4):
        d = ACC_D + nb * 16; s = ACC_S + nb * 16
        for r in range(4): I(f"v_mul_f32 v{d+r}, s4, v{d+r}")
        for r in range(4): I(f"v_mul_f32 v{d+4+r}, s5, v{d+r}")
        for r in range(4): I(f"v_exp_f32 v{d+4+r}, v{d+4+r}")
        for r in range(4): I(f"v_add_f32 v{d+4+r}, 1.0, v{d+4+r}")
        for r in range(4): I(f"v_rcp_f32 v{d+4+r}, v{d+4+r}")
        for r in range(2): I(f"v_lshlrev_b32 v{d+8+2*r}, 16, v{XR+2*nb+r}\nv_and_b32 v{d+9+2*r}, 0xffff0000, v{XR+2*nb+r}")
        for r in range(4): I(f"v_mul_f32 v{d+r}, v{d+r}, v{d+4+r}")
        for r in range(4): I(f"v_fmac_f32 v{d+8+r}, v{d+r}, v{s+r}")
        for r in range(2): I(f"v_cvt_pk_bf16_f32 v{d+12+r}, v{d+8+2*r}, v{d+9+2*r}")
        I(f"buffer_store_dwordx2 {vr(d+12,2)}, v{T}, {sr(S_OUT)}, s3 offen offset:{32*nb}")
    if DIAG:
        ST(6); I("s_waitcnt vmcnt(0)"); ST(7); ST.dump(68, SW)
    P.L("p_end:"); I("s_endpgm"); P.L("p_z:")
    tf = lambda: [P.trace([("p_a:", "p_z:", 1)])]
    finish(P, tf, "post")
    return P

def build(path):
    ref = open(f"cdna_kernels/{KN}.s.ref").read().split("\n")
    head = [l for l in ref if l.startswith(";") and "@launch" not in l and "Override launch" not in l and "grid=ceil" not in l]
    out = "\n".join(head) + "\n"
    out += "; @launch kernel=ln_kernel grid=(256,1,1) block=(256,1,1) lds=0\n"
    out += "; @launch kernel=main_kernel grid=(256,1,1) block=(256,1,1) lds=163840\n"
    out += "; @launch kernel=post_kernel grid=(256,1,1) block=(256,1,1) lds=131072\n"
    out += '.amdgcn_target "amdgcn-amd-amdhsa--gfx950"\n.text\n'
    out += gen_ln().text() + gen_main().text() + gen_post().text()
    out += '.section .rodata,"a"\n' + descriptor("ln_kernel", 40, 40, 48) + descriptor("main_kernel", 512, 256) + descriptor("post_kernel", 512, 256)
    open(path, "w").write(out)

if __name__ == "__main__":
    if "diag" in sys.argv[2:]: DIAG = True
    build(sys.argv[1] if len(sys.argv) > 1 else f"cdna_kernels/{KN}.s")
```

```python
import math, struct, sys
from asmlib import *

KN = "recurrent_scan__mha_block_cached__glu_gated_bilinear__prompt"
def f2u(x): return struct.unpack("<I", struct.pack("<f", x))[0]
CSC = math.log2(math.e) / math.sqrt(128.0)
WS_XN, WS_H, WS_O = 0, 0x400000, 0x1000000
SZ_XN, SZ_H, SZ_O = 0x200000, 0x700000, 0x1000000
H_RB, O_RB, X_RB = 56 * 1024, 128 * 1024, 16 * 1024
MF = "v_mfma_f32_16x16x32_bf16"
def vr(b, n=4): return f"v[{b}:{b+n-1}]"
def ar(b, n=4): return f"a[{b}:{b+n-1}]"
def sr(b, n=4): return f"s[{b}:{b+n-1}]"

def srd(P, d, ptr, off, size):
    if off == 0:
        P.I(f"s_mov_b32 s{d}, s{ptr}\ns_mov_b32 s{d+1}, s{ptr+1}")
    else:
        P.I(f"s_add_u32 s{d}, s{ptr}, {off}\ns_addc_u32 s{d+1}, s{ptr+1}, 0")
    P.I(f"s_mov_b32 s{d+2}, {size}\ns_mov_b32 s{d+3}, 0x00020000")

DIAG = False
PREF_LN = True
PREF_POST = True
STAMP0 = 72
class Stamper:
    def __init__(self, P, kid): self.P = P; self.kid = kid; self.n = 0
    def __call__(self, n):
        if not DIAG: return
        self.n = max(self.n, n + 1)
        self.P.I(f"s_memtime s[96:97]\ns_memrealtime s[98:99]\ns_waitcnt lgkmcnt(0)\ns_mov_b32 s{STAMP0+2*n}, s96\ns_mov_b32 s{STAMP0+2*n+1}, s98")
    def dump(self, wsptr, wave):
        if not DIAG: return
        I = self.P.I
        if DIAG == 2:
            I(f"s_load_dwordx2 s[96:97], s[0:1], 80\ns_waitcnt lgkmcnt(0)\ns_sub_u32 s92, s96, {512*self.kid}\ns_subb_u32 s93, s97, 0\ns_mov_b32 s95, 0x00020000")
            I(f"s_add_u32 s96, s2, s{wave}\ns_cmp_eq_u32 s96, 0\ns_cselect_b32 s94, 64, 0\nv_mov_b32 v2, 0")
            sel = {1: [0, 2, 3, 4, 5, 8], 2: [0, 2, 3, 5, 7]}[self.kid]; base = {1: 1, 2: 9}[self.kid]
            for j, i in enumerate(sel): I(f"v_mov_b32 v3, s{STAMP0+2*i+1}\nbuffer_store_dword v3, v2, s[92:95], 0 offen offset:{4*(base+j)}")
            if self.kid == 1: I(f"s_sub_u32 s96, s{STAMP0+10}, s{STAMP0+8}\nv_mov_b32 v3, s96\nbuffer_store_dword v3, v2, s[92:95], 0 offen offset:{4*7}")
            return
        I(f"s_load_dwordx2 s[96:97], s[0:1], 88\ns_waitcnt lgkmcnt(0)\ns_add_u32 s92, s96, {0x3000000 + self.kid*0x40000}\ns_addc_u32 s93, s97, 0\ns_mov_b32 s94, 0x40000\ns_mov_b32 s95, 0x00020000")
        I(f"s_lshl_b32 s96, s2, 2\ns_add_u32 s96, s96, s{wave}\ns_lshl_b32 s96, s96, 7\nv_mov_b32 v2, s96")
        for i in range(2 * self.n): I(f"v_mov_b32 v3, s{STAMP0+i}\nbuffer_store_dword v3, v2, s[92:95], 0 offen offset:{4*i}")

def header(P, name):
    P.L(f".globl {name}\n.p2align 8\n.type {name},@function\n{name}:")

def descriptor(name, vgpr, accum, sgpr=102):
    return f""".p2align 6
.amdhsa_kernel {name}
  .amdhsa_next_free_vgpr {vgpr}
  .amdhsa_next_free_sgpr {sgpr}
  .amdhsa_accum_offset {accum}
  .amdhsa_group_segment_fixed_size 0
  .amdhsa_kernarg_size 96
  .amdhsa_user_sgpr_count 2
  .amdhsa_user_sgpr_kernarg_segment_ptr 1
  .amdhsa_system_sgpr_workgroup_id_x 1
.end_amdhsa_kernel
"""

def red32(P, v, t):
    for m in ("quad_perm:[1,0,3,2]", "quad_perm:[2,3,0,1]", "row_half_mirror", "row_mirror"):
        P.I(f"v_add_f32_dpp v{v}, v{v}, v{v} {m} row_mask:0xf bank_mask:0xf")
    P.I(f"v_mov_b32 v{t}, v{v}\nv_permlane16_swap_b32 v{v}, v{t}\nv_add_f32 v{v}, v{v}, v{t}")

def gen_ln():
    P = Prog(); I = P.I
    header(P, "ln_kernel"); P.L("ln_a:")
    I("s_cmp_ge_u32 s2, 256\ns_cbranch_scc1 ln_end")
    if DIAG == 2:
        I("s_memrealtime s[40:41]\ns_load_dwordx2 s[44:45], s[0:1], 80\ns_waitcnt lgkmcnt(0)\ns_cmp_eq_u32 s2, 0\ns_cselect_b32 s46, 4, 0\ns_mov_b32 s47, 0x00020000\nv_mov_b32 v2, 0\nv_mov_b32 v3, s40\nbuffer_store_dword v3, v2, s[44:47], 0 offen\ns_waitcnt vmcnt(0)")
    I("s_load_dwordx2 s[4:5], s[0:1], 0\ns_load_dwordx2 s[6:7], s[0:1], 88")
    I("""v_lshrrev_b32 v1, 5, v0
    s_lshl_b32 s3, s2, 3
    v_add_u32 v1, s3, v1
    v_and_b32 v2, 31, v0
    v_lshlrev_b32 v3, 10, v1
    v_lshl_add_u32 v3, v2, 4, v3
    s_waitcnt lgkmcnt(0)""")
    srd(P, 8, 4, 0, 0x200000); srd(P, 12, 6, WS_XN, SZ_XN)
    I("buffer_load_dwordx4 v[8:11], v3, s[8:11], 0 offen\nbuffer_load_dwordx4 v[12:15], v3, s[8:11], 0 offen offset:512")
    if PREF_LN:
        I("s_load_dwordx4 s[16:19], s[0:1], 8\ns_load_dwordx2 s[20:21], s[0:1], 24\ns_load_dwordx4 s[24:27], s[0:1], 48")
        I("s_lshl_b32 s3, s2, 8\nv_add_u32 v32, s3, v0\nv_lshlrev_b32 v33, 6, v32\nv_and_b32 v33, 0xffffff80, v33\ns_waitcnt lgkmcnt(0)")
        srd(P, 28, 20, 0, 0x400000)
        I("buffer_load_dword v34, v33, s[28:31], 0 offen")
        I("""s_lshr_b32 s4, s2, 5
        s_cmp_lt_u32 s4, 2
        s_cselect_b32 s32, s24, s26
        s_cselect_b32 s33, s25, s27
        s_cmp_eq_u32 s4, 4
        s_cselect_b32 s32, s16, s32
        s_cselect_b32 s33, s17, s33
        s_cmp_eq_u32 s4, 5
        s_cselect_b32 s32, s18, s32
        s_cselect_b32 s33, s19, s33
        s_and_b32 s3, s2, 63
        s_lshl_b32 s3, s3, 15
        s_and_b32 s5, s2, 31
        s_lshl_b32 s5, s5, 19
        s_cmp_lt_u32 s4, 4
        s_cselect_b32 s3, s3, s5""")
        I(f"s_mov_b32 s34, 0x1000000\ns_cselect_b32 s34, {512*3584}, s34\ns_cmp_lt_u32 s4, 6\ns_cselect_b32 s34, s34, 0\ns_mov_b32 s35, 0x00020000")
        I("v_lshlrev_b32 v35, 7, v0\nbuffer_load_dword v36, v35, s[32:35], s3 offen")
    I("""v_lshrrev_b32 v4, 4, v1
    v_lshlrev_b32 v4, 14, v4
    v_and_b32 v5, 15, v1
    v_lshl_add_u32 v4, v5, 4, v4
    v_lshrrev_b32 v5, 2, v2
    v_lshl_add_u32 v4, v5, 10, v4
    v_and_b32 v5, 1, v2
    v_lshl_add_u32 v4, v5, 9, v4
    v_bfe_u32 v5, v2, 1, 1
    v_lshl_add_u32 v4, v5, 3, v4
    v_add_u32 v5, 8192, v4""")
    I("s_waitcnt vmcnt(2)" if PREF_LN else "s_waitcnt vmcnt(0)")
    for i in range(8):
        I(f"v_lshlrev_b32 v{16+2*i}, 16, v{8+i}\nv_and_b32 v{17+2*i}, 0xffff0000, v{8+i}")
    I("v_add_f32 v6, v16, v17")
    for i in range(2, 16): I(f"v_add_f32 v6, v6, v{16+i}")
    red32(P, 6, 7)
    I(f"v_mul_f32 v6, {hex(f2u(1/512))}, v6")
    for i in range(16): I(f"v_sub_f32 v{16+i}, v{16+i}, v6")
    I("v_mul_f32 v6, v16, v16")
    for i in range(1, 16): I(f"v_fmac_f32 v6, v{16+i}, v{16+i}")
    red32(P, 6, 7)
    I(f"v_mov_b32 v7, {hex(f2u(1e-5))}\nv_fmac_f32 v7, {hex(f2u(1/512))}, v6\nv_rsq_f32 v7, v7")
    I(f"v_mul_f32 v7, {hex(f2u(CSC))}, v7")
    for i in range(16): I(f"v_mul_f32 v{16+i}, v{16+i}, v7")
    for i in range(8): I(f"v_cvt_pk_bf16_f32 v{8+i}, v{16+2*i}, v{17+2*i}")
    I("""buffer_store_dwordx2 v[8:9], v4, s[12:15], 0 offen
    buffer_store_dwordx2 v[10:11], v4, s[12:15], 0 offen offset:256
    buffer_store_dwordx2 v[12:13], v5, s[12:15], 0 offen
    buffer_store_dwordx2 v[14:15], v5, s[12:15], 0 offen offset:256""")
    P.L("ln_end:"); I("s_endpgm"); P.L("ln_z:")
    tf = lambda: [P.trace([("ln_a:", "ln_z:", 1)])]
    finish(P, tf, "ln")
    return P

def finish(P, tf, name, quiet=False):
    solve_waits(tf())
    ins = fix_hazards(P, tf)
    solve_waits(tf())
    assert not sum((find_hazards(t) for t in tf()), [])
    errs = sum((check_mem(t) for t in tf()), [])
    if errs:
        for e in errs[:30]: print("MEMERR", name, e, file=sys.stderr)
        raise SystemExit(1)
    if not quiet:
        print(f"{name}: {sum(isinstance(x, Ins) for x in P.items)} instrs, {len(ins)} nops inserted", file=sys.stderr)
    return ins

class Gaps:
    def __init__(self, n, modulo=False):
        self.n = n; self.mod = modulo
        self.sc = [[] for _ in range(n)]; self.vec = [[] for _ in range(n)]
    def ix(self, g): return g % self.n if self.mod else g
    def cost(self, g): return sum(2 if k in "EM" else 1 for k, _ in self.vec[self.ix(g)])
    def has(self, g, kinds):
        if not self.mod and not (0 <= g < self.n): return False
        return any(k in kinds for k, _ in self.vec[self.ix(g)])
    def fits(self, g, k):
        c = self.cost(g)
        if k in "EM":
            if c: return False
            if k == "E" and (self.has(g - 1, "M") or self.has(g + 1, "M")): return False
            if k == "M" and (self.has(g - 1, "E") or self.has(g + 1, "E") or self.cost(g-1) == 2 and self.has(g - 1, "V")): return False
            return True
        if c >= 2: return False
        if k == "V" and c == 1 and self.has(g + 1, "M"): return False
        return True
    def put(self, g, k, item, force=False):
        assert force or self.fits(g, k), (g, k, self.vec[self.ix(g)])
        v = self.vec[self.ix(g)]
        if k == "D":
            i = 0
            while i < len(v) and v[i][0] == "D": i += 1
            v.insert(i, (k, item))
        else: v.append((k, item))
        return g
    def first(self, g0, k, item, g1=None):
        g = g0
        lim = (g0 + self.n) if self.mod else self.n
        while g < lim and not self.fits(g, k): g += 1
        if g >= lim or (g1 is not None and g > g1):
            g = min(g1 if g1 is not None else self.n - 1, lim - 1); return self.put(max(g, min(g0, lim - 1)), k, item, force=True)
        return self.put(g, k, item)
    def scal(self, g, item):
        self.sc[self.ix(g)].append(item); return g
    def sfirst(self, g0, item, back=False):
        g = g0
        while self.sc[self.ix(g)] and (self.mod or 0 < g < self.n - 1): g += -1 if back else 1
        return self.scal(g, item)

def emit_gaps(P, mf, G, lo=0, hi=None, res=lambda it: it):
    hi = G.n if hi is None else hi
    for g in range(lo, hi):
        if mf[g] is not None: P.add(mf[g])
        for it in G.sc[g] + [it for _, it in G.vec[g]]:
            r = res(it)
            if r is None: continue
            for x in (r if isinstance(r, list) else [r]): P.add(x)

def WL(): return Ins("s_waitcnt lgkmcnt(0)", wait=dict(kind="lgkm", n=None, drop=True))
def WV(kind="vm"): return Ins("s_waitcnt vmcnt(0)", wait=dict(kind=kind, n=None, drop=True))

S_K, S_V, S_WQ, S_WG, S_WU, S_XN, S_H, S_O = 8, 12, 16, 20, 24, 28, 32, 36
S_W, S_HD, S_QB = 40, 41, 42
S_W4K = 43
S_KOFF, S_VOFF = 44, 45
S_WQO, S_GUO, S_XO = 46, 47, 48
S_M0Q, S_M0G = 49, 50
S_CNT, S_PASS, S_T0, S_T1 = 51, 52, 53, 54
S_W2K = 55
V_KV = 1
V_KA = 5
V_VA = 9
V_IDX = 17
V_L16 = 18
V_WQ = 19
V_GU = 23
V_XO = 25
V_QA = 29
V_GA = 33
V_T = 37
V_L = 32
V_CI = 48
V_P = 64
V_S = 128
V_Q = 192
A_O, A_K, A_V, A_ONE = 0, 128, 192, 224
A_X, A_G = 0, 64
LA, LK, LB, LV = 0, 16384, 81920, 98304
def kaddr(i): return ((i + 3) & 3) * 16384
NIT = 132

def att_mfmas(pbuf, do_qk, do_pv, first_pv, smf_first=False):
    mf = []
    for g in range(64):
        kb, qb, k = g >> 4, (g >> 2) & 3, g & 3
        ds = k if (g >> 2) % 2 == 0 else 3 - k
        s = V_S + (kb * 4 + qb) * 4
        c = vr(V_CI + 4 * qb) if k == 0 else vr(s)
        mf.append(Ins(f"{MF} {vr(s)}, {ar(A_K + kb*16 + ds*4)}, {vr(V_Q + (ds*4+qb)*4)}, {c}") if do_qk else None)
    pv = []
    for j in range(64):
        db, qb, k = j >> 3, (j >> 1) & 3, j & 1
        ks = k if qb % 2 == 0 else 1 - k
        o = A_O + (db * 4 + qb) * 4
        c = "0" if (first_pv and k == 0) else ar(o)
        pv.append(Ins(f"{MF} {ar(o)}, {ar(A_V + (db&3)*8 + ks*4)}, {vr(V_P + pbuf*32 + qb*8 + ks*4)}, {c}"))
    smf = [Ins(f"v_smfmac_f32_16x16x64_bf16 {vr(V_L+4*qb)}, {ar(A_ONE)}, {vr(V_P + pbuf*32 + qb*8, 8)}, v{V_IDX}") for qb in range(4)]
    seq = smf + pv
    mf += seq if do_pv else [None] * 68
    return mf
PV0 = 68

def att_table():
    G = Gaps(NIT, modulo=True)
    G.scal(62, ("vmw",)); G.scal(63, ("bar",))
    dm = [65, 66, 67, 69, 71, 73, 75, 77]
    for n in range(4): G.put(dm[n], "M", ("dmav", n))
    for n in range(4): G.put(dm[4 + n], "M", ("dmak", n))
    G.scal(64, ("m0v",)); G.scal(70, ("m0k",)); G.scal(78, ("adv",)); G.scal(79, ("adk",))
    def vread(db, gs):
        for i, g in enumerate(gs):
            G.put(g, "D", ("vrd", db, i))
    vread(2, [68, 68, 70, 70]); vread(3, [76, 76, 78, 78])
    for db in range(4, 8):
        b = PV0 + 8 * (db - 2); vread(db, [b, b + 2, b + 4, b + 5])
    vread(0, [44, 46, 48, 50]); vread(1, [52, 54, 56, 58])
    for i in range(4): G.put(116 + 2 * i, "D", ("krd", 0, i, 1))
    for i in range(4): G.put(124 + 2 * i, "D", ("krd", 1, i, 1))
    for i in range(4): G.put(0 + i, "D", ("krd", 2, i, 0))
    for i in range(4): G.put(4 + i, "D", ("krd", 3, i, 0))
    for g in (131, 15, 31, 47): G.sfirst(g, ("lgw",), back=True)
    for db in range(8): G.sfirst(PV0 + 8 * db - 1, ("lgw",), back=True)
    eg = []; g = 0
    for e in range(64):
        g = max(g, 4 * (e >> 2) + 8)
        while not G.fits(g, "E"): g += 1
        G.put(g, "E", ("exp", e, g // NIT)); eg.append(g)
    g = 0
    for c in range(32):
        g = max(g, eg[2 * c + 1] + 1)
        while not G.fits(g, "V"): g += 1
        assert g < NIT + 4 * (c >> 1), (c, g)
        G.put(g, "V", ("cvt", c, g // NIT))
    return G

def att_res(it, i, trip_stride, have):
    w = it[0]
    tg = lambda nm, t, base: (nm, t, trip_stride, base + kaddr(t))
    if w == "vmw": return WV("vmbar")
    if w == "bar": return Ins("s_barrier")
    if w == "lgw": return WL()
    if w == "m0v": return Ins(f"s_add_u32 m0, s{S_W4K}, {LV + kaddr(i+3)}") if have("dmav", i + 3) else None
    if w == "m0k": return Ins(f"s_add_u32 m0, s{S_W4K}, {LK + kaddr(i+5)}") if have("dmak", i + 5) else None
    if w == "adv": return Ins(f"s_add_u32 s{S_VOFF}, s{S_VOFF}, 16384") if have("dmav", i + 3) else None
    if w == "adk": return Ins(f"s_add_u32 s{S_KOFF}, s{S_KOFF}, 16384") if have("dmak", i + 5) else None
    if w == "dmav":
        return Ins(f"buffer_load_dwordx4 v{V_KV+it[1]}, {sr(S_V)}, s{S_VOFF} offen offset:{1024*it[1]} lds", dma=tg("V", i + 3, LV)) if have("dmav", i + 3) else None
    if w == "dmak":
        return Ins(f"buffer_load_dwordx4 v{V_KV+it[1]}, {sr(S_K)}, s{S_KOFF} offen offset:{1024*it[1]} lds", dma=tg("K", i + 5, LK)) if have("dmak", i + 5) else None
    if w == "vrd":
        db, k = it[1], it[2]; ks, half = k >> 1, k & 1
        if not have("vrd", i): return None
        return Ins(f"ds_read_b64_tr_b16 {ar(A_V + (db&3)*8 + ks*4 + half*2, 2)}, v{V_VA+db} offset:{kaddr(i) + ks*8192 + half*4096}", rd=tg("V", i, LV))
    if w == "krd":
        kb, ds, t = it[1], it[2], i + 1 + it[3]
        if not have("krd", t): return None
        return Ins(f"ds_read_b128 {ar(A_K + kb*16 + ds*4)}, v{V_KA+ds} offset:{kaddr(t) + kb*4096}", rd=tg("K", t, LK))
    if w == "exp":
        t = i + 1 - it[2]
        return Ins(f"v_exp_f32 v{V_S+it[1]}, v{V_S+it[1]}") if have("exp", t) else None
    if w == "cvt":
        c, t = it[1], i + 1 - it[2]
        if not have("exp", t): return None
        n = c >> 1; kb, qb = n >> 2, n & 3
        d = V_P + (t & 1) * 32 + qb * 8 + (kb >> 1) * 4 + (kb & 1) * 2 + (c & 1)
        return Ins(f"v_cvt_pk_bf16_f32 v{d}, v{V_S+2*c}, v{V_S+2*c+1}")
    raise ValueError(w)

def proj_step(P, t, gu, rolled, last):
    blks = ([("G", 0), ("U", 0), ("G", 1), ("U", 1), ("G", 2), ("U", 2), ("G", 3), ("U", 3)] if gu else []) + \
           [(m, ds) for ds in range(4) for m in "XY"]
    nb = len(blks); N = nb * 8
    stride = 2 if rolled else 0
    xb = A_X + (t & 1) * 32
    def acc(b, qb):
        m, i = b
        return {"G": ar(A_G + (i * 4 + qb) * 4), "U": vr(V_P + (i * 4 + qb) * 4),
                "X": vr(V_Q + (i * 4 + qb) * 4), "Y": vr(V_S + (i * 4 + qb) * 4)}[m]
    mf = []
    for bi, b in enumerate(blks):
        for j in range(8):
            qb, k = j >> 1, j & 1; ks = k if qb % 2 == 0 else 1 - k
            mf.append(Ins(f"{MF} {acc(b,qb)}, {ar(A_V + (bi&3)*8 + ks*4)}, {ar(xb + qb*8 + ks*4)}, {acc(b,qb)}"))
    G = Gaps(N)
    def rd(b, k, tt, dst):
        m, i = b; ks, half = k >> 1, k & 1
        so = (tt & 1) * 16384 if rolled else (tt & 3) * 16384 - (t & 2) * 16384 * 0
        so = (tt & 1) * 16384
        if m in "XY":
            return Ins(f"ds_read_b64_tr_b16 {ar(dst + ks*4 + half*2, 2)}, v{V_QA+i} offset:{so + ks*8192 + half*4096 + (8 if m=='Y' else 0)}", rd=("WQ", tt, stride, ("A", None)))
        return Ins(f"ds_read_b64_tr_b16 {ar(dst + ks*4 + half*2, 2)}, v{V_GA+i} offset:{so + (8192 if m=='U' else 0) + ks*4096 + half*2048}", rd=("GU", tt, stride, ("B", None)))
    toggles = []
    for bi in range(nb):
        nxt = bi + 2
        if nxt < nb:
            for k in range(4): G.put(bi * 8 + k, "D", rd(blks[nxt], k, t, A_V + (nxt & 3) * 8))
        elif not last:
            for k in range(4): G.put(bi * 8 + k, "D", rd(blks[nxt - nb], k, t + 1, A_V + (nxt & 3) * 8))
        G.scal(bi * 8 + 7, WL())
    if t & 1 and not last:
        for i in range(4):
            lastq = (nb - 8 + 2 * i + 1 - 2) * 8 + 3
            if gu:
                G.first(max(lastq + 1, 0), "V", Ins(f"v_xor_b32 v{V_QA+i}, 0x8000, v{V_QA+i}"))
                lastg = max((2 * i + 1 - 2) * 8 + 3, -1)
                G.first(lastg + 1 + 4, "V", Ins(f"v_xor_b32 v{V_GA+i}, 0x8000, v{V_GA+i}"))
        if not gu:
            for i in (1, 2, 3): G.first((2 * i - 1) * 8 + 4, "V", Ins(f"v_xor_b32 v{V_QA+i}, 0x8000, v{V_QA+i}"))
            G.first(4, "V", Ins(f"v_xor_b32 v{V_QA}, 0x8000, v{V_QA}"))
    vm_gaps = [g for g in range(N) if g % 8 >= 4]
    if not last:
        xn = A_X + ((t + 1) & 1) * 32
        g = 0
        for n in range(8):
            qb, ks = n >> 1, n & 1
            g = G.first(max(g, vm_gaps[n]), "M", Ins(f"buffer_load_dwordx4 {ar(xn + qb*8 + ks*4)}, v{V_XO+qb}, {sr(S_XN)}, s{S_XO} offen offset:{ks*1024}"))
        G.sfirst(g + 1, Ins(f"s_add_u32 s{S_XO}, s{S_XO}, 2048"))
    B = N // 2
    G.scal(B, Ins("s_barrier"))
    after = [g for g in vm_gaps if g > B + 1]
    dmas = []
    if t <= 5:
        tt = t + 3
        dmas.append(("m0", f"s_mov_b32 m0, s{S_M0Q}"))
        for n in range(4): dmas.append(("d", Ins(f"buffer_load_dwordx4 v{V_WQ+n}, {sr(S_WQ)}, s{S_WQO} offen offset:{1024*n} lds", dma=("WQ", tt, stride, ("A", None)))))
        if gu:
            dmas.append(("m0", f"s_mov_b32 m0, s{S_M0G}"))
            for n in range(2): dmas.append(("d", Ins(f"buffer_load_dwordx4 v{V_GU+n}, {sr(S_WG)}, s{S_GUO} offen offset:{1024*n} lds", dma=("GU", tt, stride, ("B", None)))))
            dmas.append(("m0", f"s_add_u32 m0, s{S_M0G}, 8192"))
            for n in range(2): dmas.append(("d", Ins(f"buffer_load_dwordx4 v{V_GU+n}, {sr(S_WU)}, s{S_GUO} offen offset:{1024*n} lds", dma=("GU", tt, stride, ("B", None)))))
        post = [f"s_add_u32 s{S_WQO}, s{S_WQO}, {64*8192}", f"s_add_u32 s{S_M0Q}, s{S_M0Q}, 16384", f"s_and_b32 s{S_M0Q}, s{S_M0Q}, 0xffff"]
        if gu: post += [f"s_add_u32 s{S_GUO}, s{S_GUO}, {64*3584}", f"s_sub_u32 s{S_T0}, s{S_M0Q}, s{S_W2K}", f"s_add_u32 s{S_M0G}, s{S_T0}, {LB}"]
    else:
        kt = t - 5
        dmas.append(("m0", f"s_add_u32 m0, s{S_W4K}, {LK + kaddr(kt)}"))
        for n in range(4): dmas.append(("d", Ins(f"buffer_load_dwordx4 v{V_KV+n}, {sr(S_K)}, s{S_KOFF} offen offset:{1024*n} lds", dma=("K", kt, 0, LK + kaddr(kt)))))
        dmas.append(("m0", f"s_add_u32 m0, s{S_W4K}, {LV + kaddr(kt)}"))
        for n in range(4): dmas.append(("d", Ins(f"buffer_load_dwordx4 v{V_KV+n}, {sr(S_V)}, s{S_VOFF} offen offset:{1024*n} lds", dma=("V", kt, 0, LV + kaddr(kt)))))
        post = [f"s_add_u32 s{S_KOFF}, s{S_KOFF}, 16384", f"s_add_u32 s{S_VOFF}, s{S_VOFF}, 16384"]
    ai = 0; lastg = B
    for k, d in dmas:
        if k == "m0":
            if after[ai] - 1 <= lastg or G.sc[after[ai] - 1]: ai += 1
            while after[ai] - 1 <= lastg or G.sc[after[ai] - 1]: ai += 1
            G.scal(after[ai] - 1, Ins(d))
        else:
            while not G.fits(after[ai], "M"): ai += 1
            lastg = G.put(after[ai], "M", d); ai += 1
    g = lastg + 1
    for s in post: g = G.sfirst(g, Ins(s)) + 1
    if not last: G.sfirst(N - 2, WV("vmbar"), back=True)
    else: pass
    return mf, G, blks, acc

def gen_main():
    P = Prog(); I = P.I
    header(P, "main_kernel"); P.L("m_a:")
    I("s_cmp_ge_u32 s2, 256\ns_cbranch_scc1 m_end")
    ST = Stamper(P, 1); ST(0)
    I("""s_load_dwordx4 s[60:63], s[0:1], 8
    s_load_dwordx2 s[64:65], s[0:1], 24
    s_load_dwordx4 s[68:71], s[0:1], 48
    s_load_dwordx2 s[66:67], s[0:1], 88""")
    I(f"""v_lshrrev_b32 v1, 6, v0
    v_and_b32 v0, 63, v0
    s_and_b32 s3, s2, 7
    v_readfirstlane_b32 s{S_W}, v1
    s_lshr_b32 s4, s2, 3
    s_and_b32 s5, s4, 3
    s_lshl_b32 s3, s3, 2
    s_add_u32 s{S_HD}, s3, s5
    s_lshr_b32 s{S_QB}, s4, 2
    s_lshl_b32 s{S_W4K}, s{S_W}, 12
    s_lshl_b32 s{S_W2K}, s{S_W}, 11
    v_lshlrev_b32 v{V_L16}, 4, v0""")
    T = V_T
    I(f"v_lshrrev_b32 v{T}, 4, v0\nv_and_b32 v{T+1}, 15, v0")
    I(f"v_lshlrev_b32 v{T+2}, 1, v{T}\nv_xor_b32 v{T+2}, v{T+2}, v{T+1}")
    for n, fx in enumerate((0, 8, 9, 1)):
        I(f"""v_xor_b32 v{T+3}, {fx}, v{T+2}
        v_lshlrev_b32 v{T+3}, 4, v{T+3}
        v_lshl_add_u32 v{V_KV+n}, v{T}, 8, v{T+3}
        v_lshl_add_u32 v{V_WQ+n}, v{T}, 13, v{T+3}""")
        if n: I(f"v_add_u32 v{V_WQ+n}, {n*(4*8192-1024)}, v{V_WQ+n}")
    I("s_waitcnt lgkmcnt(0)")
    I(f"s_lshl_b32 s3, s{S_HD}, 8\ns_sub_u32 s4, 0x400000, s3")
    srd(P, S_WQ, 64, "s3", "s4")
    srd(P, S_XN, 66, WS_XN, SZ_XN)
    I(f"s_lshl_b32 s3, s{S_HD}, 7\ns_sub_u32 s4, {512*3584}, s3")
    srd(P, S_WG, 68, "s3", "s4"); srd(P, S_WU, 70, "s3", "s4")
    I(f"s_mul_i32 s{S_WQO}, s{S_W}, {16*8192}\ns_mul_i32 s{S_GUO}, s{S_W}, {16*3584}")
    I(f"""v_lshrrev_b32 v{T+3}, 3, v0
    v_and_b32 v{T+4}, 7, v0
    v_and_b32 v{T+5}, 6, v{T+3}
    v_xor_b32 v{T+4}, v{T+4}, v{T+5}
    v_lshlrev_b32 v{T+4}, 4, v{T+4}
    v_mul_u32_u24 v{T+3}, 3584, v{T+3}
    v_add_u32 v{V_GU}, v{T+3}, v{T+4}
    v_add_u32 v{V_GU+1}, {8*3584-1024}, v{V_GU}""")
    for qb in range(4): I(f"v_add_u32 v{V_XO+qb}, {qb*X_RB}, v{V_L16}")
    I(f"s_lshl_b32 s3, s{S_QB}, 2\ns_add_u32 s3, s3, s{S_W}\ns_lshl_b32 s{S_XO}, s3, 16")
    I(f"s_cmp_ge_u32 s{S_HD}, 28\ns_cbranch_scc1 mq_pre")

    def w_dma(tt, gu):
        I(f"s_add_u32 m0, s{S_W4K}, {LA + tt*16384}\ns_nop 0")
        for n in range(4): I(f"buffer_load_dwordx4 v{V_WQ+n}, {sr(S_WQ)}, s{S_WQO} offen offset:{1024*n} lds", dma=("WQ", tt, 0, ("A", None)))
        I(f"s_add_u32 s{S_WQO}, s{S_WQO}, {64*8192}")
        if gu:
            for m, srdn in ((0, S_WG), (1, S_WU)):
                I(f"s_add_u32 m0, s{S_W2K}, {LB + tt*16384 + m*8192}\ns_nop 0")
                for n in range(2): I(f"buffer_load_dwordx4 v{V_GU+n}, {sr(srdn)}, s{S_GUO} offen offset:{1024*n} lds", dma=("GU", tt, 0, ("B", None)))
            I(f"s_add_u32 s{S_GUO}, s{S_GUO}, {64*3584}")
    def kv_dma(kt, k=True, v=True):
        if k:
            I(f"s_add_u32 m0, s{S_W4K}, {LK + kaddr(kt)}\ns_nop 0")
            for n in range(4): I(f"buffer_load_dwordx4 v{V_KV+n}, {sr(S_K)}, s{S_KOFF} offen offset:{1024*n} lds", dma=("K", kt, 0, LK + kaddr(kt)))
            I(f"s_add_u32 s{S_KOFF}, s{S_KOFF}, 16384")
        if v:
            I(f"s_add_u32 m0, s{S_W4K}, {LV + kaddr(kt)}\ns_nop 0")
            for n in range(4): I(f"buffer_load_dwordx4 v{V_KV+n}, {sr(S_V)}, s{S_VOFF} offen offset:{1024*n} lds", dma=("V", kt, 0, LV + kaddr(kt)))
            I(f"s_add_u32 s{S_VOFF}, s{S_VOFF}, 16384")

    def proj_phase(gu, pre):
        P.L(f"{pre}_pre:")
        w_dma(0, gu)
        for n in range(8):
            qb, ks = n >> 1, n & 1
            I(f"buffer_load_dwordx4 {ar(A_X + qb*8 + ks*4)}, v{V_XO+qb}, {sr(S_XN)}, s{S_XO} offen offset:{ks*1024}")
        I(f"s_add_u32 s{S_XO}, s{S_XO}, 2048")
        w_dma(1, gu); w_dma(2, gu)
        I(f"s_lshl_b32 s3, s{S_HD}, 19")
        srd(P, S_K, 60, "s3", 0x80000); srd(P, S_V, 62, "s3", 0x80000)
        I(f"s_mov_b32 s{S_KOFF}, s{S_W4K}\ns_mov_b32 s{S_VOFF}, s{S_W4K}")
        kv_dma(0)
        srd(P, S_H, 66, WS_H, SZ_H); srd(P, S_O, 66, WS_O, SZ_O)
        I(f"s_add_u32 s{S_M0Q}, s{S_W4K}, {3*16384}\ns_add_u32 s{S_M0G}, s{S_W2K}, {LB + 3*16384}\ns_mov_b32 s{S_PASS}, 0")
        I(f"""v_and_b32 v{T+2}, 7, v{T+1}
        v_lshlrev_b32 v{T+2}, 1, v{T+2}
        v_lshrrev_b32 v{T+3}, 3, v{T+1}
        v_mul_u32_u24 v{T+3}, 9, v{T+3}
        v_xor_b32 v{T+2}, v{T+2}, v{T+3}
        v_xor_b32 v{T+2}, v{T+2}, v{T}
        v_lshlrev_b32 v{T+3}, 8, v{T+1}
        v_add_u32 v{T+3}, {LK}, v{T+3}""")
        for ds in range(4):
            I(f"v_xor_b32 v{T+4}, {4*ds}, v{T+2}\nv_lshl_add_u32 v{V_KA+ds}, v{T+4}, 4, v{T+3}")
        I(f"""v_lshrrev_b32 v{T+2}, 2, v0
        v_and_b32 v{T+3}, 7, v{T+2}
        v_lshlrev_b32 v{T+3}, 1, v{T+3}
        v_lshrrev_b32 v{T+4}, 3, v{T+2}
        v_mul_u32_u24 v{T+4}, 9, v{T+4}
        v_xor_b32 v{T+3}, v{T+3}, v{T+4}
        v_and_b32 v{T+4}, 3, v0
        v_xor_b32 v{T+5}, v{T+3}, v{T+4}
        v_lshlrev_b32 v{T+6}, 8, v{T+2}""")
        for ds in range(4):
            I(f"v_xor_b32 v{T+7}, {4*ds}, v{T+5}\nv_lshl_add_u32 v{V_QA+ds}, v{T+7}, 4, v{T+6}")
        I(f"""v_bfe_u32 v{T+4}, v0, 1, 1
        v_xor_b32 v{T+5}, v{T+3}, v{T+4}
        v_and_b32 v{T+7}, 1, v0
        v_lshl_add_u32 v{T+6}, v{T+7}, 3, v{T+6}
        v_add_u32 v{T+6}, {LV}, v{T+6}""")
        for db in range(8):
            I(f"v_xor_b32 v{T+8}, {2*db}, v{T+5}\nv_lshl_add_u32 v{V_VA+db}, v{T+8}, 4, v{T+6}")
        if gu:
            I(f"""v_and_b32 v{T+3}, 6, v{T+2}
            v_xor_b32 v{T+5}, v{T+3}, v{T+4}
            v_lshlrev_b32 v{T+6}, 7, v{T+2}
            v_lshl_add_u32 v{T+6}, v{T+7}, 3, v{T+6}
            v_add_u32 v{T+6}, {LB}, v{T+6}""")
            for fb in range(4):
                I(f"v_xor_b32 v{T+8}, {2*fb}, v{T+5}\nv_lshl_add_u32 v{V_GA+fb}, v{T+8}, 4, v{T+6}")
        I(f"""v_and_b32 v{T+3}, 1, v0
        v_mov_b32 v{T+4}, 0xaaaaaaaa
        v_mul_lo_u32 v{T+3}, v{T+3}, v{T+4}
        v_add_u32 v{V_IDX}, 0x44444444, v{T+3}
        v_mov_b32 v{T+4}, 0x3f803f80""")
        for i in range(4): I(f"v_accvgpr_write_b32 a{A_ONE+i}, v{T+4}")
        for i in range(16): I(f"v_mov_b32 v{V_CI+i}, 0")
        for i in range(128): I(f"v_mov_b32 v{V_S+i}, 0")
        if gu:
            for i in range(64): I(f"v_mov_b32 v{V_P+i}, 0\nv_accvgpr_write_b32 a{A_G+i}, 0")
        ST(1)
        P.add(WV("vmbar")); I("s_barrier")
        ST(2)
        mf, G, blks, acc = proj_step(P, 0, gu, True, False)
        for bi in range(2):
            m, i = blks[bi]
            for k in range(4):
                ks, half = k >> 1, k & 1
                if m in "XY": I(f"ds_read_b64_tr_b16 {ar(A_V + bi*8 + ks*4 + half*2, 2)}, v{V_QA+i} offset:{ks*8192 + half*4096 + (8 if m=='Y' else 0)}", rd=("WQ", 0, 0, ("A", None)))
                else: I(f"ds_read_b64_tr_b16 {ar(A_V + bi*8 + ks*4 + half*2, 2)}, v{V_GA+i} offset:{(8192 if m=='U' else 0) + ks*4096 + half*2048}", rd=("GU", 0, 0, ("B", None)))
        I(f"s_mov_b32 s{S_CNT}, 0")
        P.add(WL())
        P.L(f".p2align 3\n{pre}_loop:"); P.L(f"{pre}_loop_:")
        emit_gaps(P, mf, G)
        mf, G, blks, acc = proj_step(P, 1, gu, True, False)
        G.sfirst(G.n - 6, Ins(f"s_add_u32 s{S_CNT}, s{S_CNT}, 1"), back=True)
        G.sfirst(G.n - 3, Ins(f"s_cmp_lt_u32 s{S_CNT}, 3"), back=True)
        emit_gaps(P, mf, G)
        I(f"s_cbranch_scc1 {pre}_loop")
        P.L(f"{pre}_tail:")
        mf, G, blks, acc = proj_step(P, 6, gu, False, False)
        emit_gaps(P, mf, G)
        mf, G, blks, acc = proj_step(P, 7, gu, False, True)
        N = G.n
        G.sfirst(N // 2 - 1, WV("vmbar"), back=True)
        for i in range(8):
            kb, ds = i >> 2, i & 3
            G.first(N - 16 + 8 * kb + ds, "D", Ins(f"ds_read_b128 {ar(A_K + kb*16 + ds*4)}, v{V_KA+ds} offset:{kaddr(0) + kb*4096}", rd=("K", 0, 0, LK + kaddr(0))))
        late = []
        if gu:
            g = 0
            G.sfirst(1, Ins(f"s_lshl_b32 s{S_T0}, s{S_QB}, 2")); G.sfirst(2, Ins(f"s_add_u32 s{S_T0}, s{S_T0}, s{S_W}"))
            G.sfirst(3, Ins(f"s_mul_i32 s{S_T0}, s{S_T0}, {4*H_RB}")); G.sfirst(4, Ins(f"s_lshl_b32 s{S_T1}, s{S_HD}, 11"))
            G.sfirst(5, Ins(f"s_add_u32 s{S_T0}, s{S_T0}, s{S_T1}"))
            for qb in range(4): G.first(4 + qb, "V", Ins(f"v_add_u32 v{V_XO+qb}, {qb*H_RB}, v{V_L16}"))
            for fb in range(4):
                for qb in range(4):
                    rdy = (2 * fb + 1) * 8 + 2 * qb + 1 + 5
                    g = max(g, rdy)
                    tmp = V_T + 3 + ((fb * 4 + qb) & 1) * 4
                    u = V_P + (fb * 4 + qb) * 4
                    dst = V_P + ((fb & 2) * 4 + qb) * 4 + (fb & 1) * 2
                    for r in range(4): g = G.first(g, "V", Ins(f"v_accvgpr_read_b32 v{tmp+r}, a{A_G + (fb*4+qb)*4 + r}"))
                    for r in range(4): g = G.first(g, "V", Ins(f"v_mul_f32 v{tmp+r}, v{tmp+r}, v{u+r}"))
                    for r in range(2): g = G.first(g, "V", Ins(f"v_cvt_pk_bf16_f32 v{dst+r}, v{tmp+2*r}, v{tmp+2*r+1}"))
                    if fb & 1:
                        late.append(Ins(f"buffer_store_dwordx4 {vr(V_P + ((fb&2)*4+qb)*4)}, v{V_XO+qb}, {sr(S_H)}, s{S_T0} offen offset:{(fb>>1)*1024}"))
        q0 = N - 64; g2 = 0; tailq = []
        for ds in range(4):
            for qb in range(4):
                x = V_Q + (ds * 4 + qb) * 4; y = V_S + (ds * 4 + qb) * 4
                rdy = q0 + (2 * ds + 1) * 8 + 2 * qb + 1 + 5
                for d, s in ((x, x), (x + 1, x + 2), (x + 2, y), (x + 3, y + 2)):
                    ins = Ins(f"v_cvt_pk_bf16_f32 v{d}, v{s}, v{s+1}")
                    gg = max(g2, rdy)
                    while gg < N and not G.fits(gg, "V"): gg += 1
                    if gg < N and not tailq: g2 = G.put(gg, "V", ins)
                    else: tailq.append(ins)
        emit_gaps(P, mf, G)
        for x in late + tailq: P.add(x)
        for i in range(16): I(f"v_mov_b32 v{V_L+i}, 0")
        P.L(f"{pre}_done:")

    proj_phase(True, "mg")
    P.L("att_pro:")
    ST(3)
    TB = att_table()
    def iteration(i, stride, have, do_qk=True, do_pv=True, first_pv=False, lo=0, hi=NIT, extra=None):
        mf = att_mfmas(i & 1, do_qk, do_pv, first_pv)
        def res(it):
            r = att_res(it, i, stride, have)
            if extra and it in extra: return extra[it] + ([r] if r else [])
            return r
        emit_gaps(P, mf, TB, lo, hi, res)
    def prologue():
        have = lambda k, t: t >= 0 and not (k == "dmav" and t == 2)
        k3 = [Ins(f"s_add_u32 m0, s{S_W4K}, {LK + kaddr(3)}"), Ins("s_nop 0")] + \
             [Ins(f"buffer_load_dwordx4 v{V_KV+n}, {sr(S_K)}, s{S_KOFF} offen offset:{1024*n} lds", dma=("K", 3, 0, LK + kaddr(3))) for n in range(4)] + \
             [Ins(f"s_add_u32 s{S_KOFF}, s{S_KOFF}, 16384")]
        P.add(WL())
        iteration(-1, 0, have, do_pv=False, extra={("m0v",): k3})
    prologue()
    if PREF_POST:
        I("s_load_dwordx2 s[56:57], s[0:1], 32\ns_load_dwordx2 s[58:59], s[0:1], 64\ns_waitcnt lgkmcnt(0)")
        srd(P, 60, 56, 0, 0x400000); srd(P, 64, 58, 0, 1792*1024)
        I(f"s_lshl_b32 s56, s2, 2\ns_add_u32 s56, s56, s{S_W}\ns_lshl_b32 s57, s56, 12\ns_lshl_b32 s56, s56, 11\nv_lshlrev_b32 v19, 2, v{V_L16}\nv_lshlrev_b32 v21, 1, v{V_L16}")
        I("buffer_load_dword v20, v19, s[60:63], s57 offen\nbuffer_load_dword v22, v21, s[64:67], s56 offen")
    P.L("att_it0:")
    ST(4)
    allh = lambda k, t: True
    iteration(0, 0, allh, first_pv=True)
    I(f"s_mov_b32 s{S_CNT}, 0\ns_branch att_l1")
    P.L("att_j:")
    P.L(".p2align 3\natt_loop:"); P.L("att_l_:")
    iteration(-1, 4, allh); iteration(0, 4, allh)
    P.L("att_l1:")
    iteration(1, 4, allh)
    iteration(2, 4, allh, extra={("adv",): [Ins(f"s_add_u32 s{S_CNT}, s{S_CNT}, 1")]}, hi=NIT)
    I(f"s_cmp_lt_u32 s{S_CNT}, 8\ns_cbranch_scc1 att_loop")
    P.L("att_tail:")
    ST(5)
    have = lambda k, t: t <= 31
    iteration(31, 0, have, do_qk=False)
    P.L("att_epi:")
    ST(6)
    T = V_S
    I(f"s_lshl_b32 s{S_T0}, s{S_QB}, 2\ns_add_u32 s{S_T0}, s{S_T0}, s{S_W}\ns_lshl_b32 s{S_T0}, s{S_T0}, 19\ns_lshl_b32 s{S_T1}, s{S_HD}, 12\ns_add_u32 s{S_T0}, s{S_T0}, s{S_T1}")
    lo, hi_ = hex(f2u(2.0 ** -24)), hex(f2u(2.0 ** 48))
    I(f"s_mov_b32 s56, {lo}\ns_mov_b32 s57, {hi_}\ns_mov_b64 s[58:59], -1")
    for qb in range(4):
        I(f"v_add_f32 v{T+qb}, v{V_L+4*qb}, v{V_L+4*qb+1}")
        I(f"v_cmp_le_f32 vcc, s56, v{T+qb}\ns_and_b64 s[58:59], s[58:59], vcc\nv_cmp_ge_f32 vcc, s57, v{T+qb}\ns_and_b64 s[58:59], s[58:59], vcc")
        I(f"v_rcp_f32 v{T+4+2*qb}, v{T+qb}\nv_add_u32 v{T+12+qb}, {qb*O_RB}, v{V_L16}")
    for i in range(8): I(f"v_mov_b32 v{T+16+i}, 0")
    n = 0
    for t in range(4):
        for qb in range(4):
            tmp = T + 24 + (n % 3) * 12; n += 1
            for hb in range(2):
                o = A_O + ((2 * t + hb) * 4 + qb) * 4
                for r in range(4): I(f"v_accvgpr_read_b32 v{tmp+4*hb+r}, a{o+r}")
            for r in range(4): I(f"v_pk_mul_f32 {vr(tmp+2*r,2)}, {vr(tmp+2*r,2)}, {vr(T+4+2*qb,2)} op_sel_hi:[1,0]")
            for r in range(4): I(f"v_cvt_pk_bf16_f32 v{tmp+8+r}, v{tmp+2*r}, v{tmp+2*r+1}")
            I(f"buffer_store_dwordx4 {vr(tmp+8)}, v{T+12+qb}, {sr(S_O)}, s{S_T0} offen offset:{t*1024}")
            I(f"{MF} {vr(T+20)}, {vr(T+16)}, {vr(tmp+8)}, {vr(T+20)}")
    I(f"s_cmp_lg_u32 s{S_PASS}, 0\ns_cbranch_scc1 m_fin")
    P.L("att_chk:")
    I(f"v_cmp_o_f32 vcc, v{T+20}, v{T+20}\ns_and_b64 s[58:59], s[58:59], vcc\ns_cmp_eq_u64 s[58:59], -1\ns_cselect_b32 s56, 0, 1")
    I(f"v_mov_b32 v{T}, s56\nv_mov_b32 v{T+1}, s{S_W}\nv_lshlrev_b32 v{T+1}, 2, v{T+1}\nds_write_b32 v{T+1}, v{T}\nv_mov_b32 v{T+1}, 0")
    I(f"s_waitcnt lgkmcnt(0)\ns_barrier\nds_read_b128 {vr(T+4)}, v{T+1}\ns_waitcnt lgkmcnt(0)")
    I(f"v_or_b32 v{T+4}, v{T+4}, v{T+5}\nv_or3_b32 v{T+4}, v{T+4}, v{T+6}, v{T+7}\nv_readfirstlane_b32 s56, v{T+4}\ns_cmp_eq_u32 s56, 0\ns_cbranch_scc1 m_fin")
    P.L("fb_a:")
    MX = V_L
    I(f"s_mov_b32 s{S_PASS}, 1\ns_mov_b32 s{S_KOFF}, s{S_W4K}\ns_mov_b32 s{S_CNT}, 0\ns_waitcnt vmcnt(0)")
    for qb in range(4): I(f"v_mov_b32 v{MX+qb}, 0xff800000")
    P.L("fb_loop:")
    I(f"s_barrier\ns_add_u32 m0, s{S_W4K}, {LK}\ns_nop 0")
    for n in range(4): I(f"buffer_load_dwordx4 v{V_KV+n}, {sr(S_K)}, s{S_KOFF} offen offset:{1024*n} lds", dma=("FK", 0, 1, LK))
    I(f"s_add_u32 s{S_KOFF}, s{S_KOFF}, 16384\ns_waitcnt vmcnt(0)\ns_barrier")
    for kb in range(4):
        for ds in range(4): I(f"ds_read_b128 {ar(A_K + kb*16 + ds*4)}, v{V_KA+ds} offset:{kb*4096}", rd=("FK", 0, 1, LK))
        I("s_waitcnt lgkmcnt(0)")
    for kb in range(4):
        for qb in range(4):
            s = V_S + (kb * 4 + qb) * 4
            for ds in range(4): I(f"{MF} {vr(s)}, {ar(A_K + kb*16 + ds*4)}, {vr(V_Q + (ds*4+qb)*4)}, {'0' if ds==0 else vr(s)}")
    for kb in range(4):
        for qb in range(4):
            s = V_S + (kb * 4 + qb) * 4
            I(f"v_max3_f32 v{MX+qb}, v{MX+qb}, v{s}, v{s+1}\nv_max3_f32 v{MX+qb}, v{MX+qb}, v{s+2}, v{s+3}")
    I(f"s_add_u32 s{S_CNT}, s{S_CNT}, 1\ns_cmp_lt_u32 s{S_CNT}, 32\ns_cbranch_scc1 fb_loop")
    P.L("fb_b:")
    for qb in range(4):
        m, t = MX + qb, MX + 4 + qb
        I(f"v_mov_b32 v{t}, v{m}\nv_permlane32_swap_b32 v{m}, v{t}\nv_max_f32 v{m}, v{m}, v{t}")
        I(f"v_mov_b32 v{t}, v{m}\nv_permlane16_swap_b32 v{m}, v{t}\nv_max_f32 v{m}, v{m}, v{t}")
        for r in range(4): I(f"v_sub_f32 v{V_CI+4*qb+r}, 0, v{m}")
    for i in range(16): I(f"v_mov_b32 v{V_L+i}, 0")
    I(f"s_mov_b32 s{S_KOFF}, s{S_W4K}\ns_mov_b32 s{S_VOFF}, s{S_W4K}\ns_barrier")
    for kt in range(3): kv_dma(kt)
    I("s_waitcnt vmcnt(0)\ns_barrier")
    for i in range(8):
        kb, ds = i >> 2, i & 3
        I(f"ds_read_b128 {ar(A_K + kb*16 + ds*4)}, v{V_KA+ds} offset:{kaddr(0) + kb*4096}", rd=("K", 0, 0, LK + kaddr(0)))
    I("s_waitcnt lgkmcnt(0)\ns_branch att_pro")
    P.L("fb_z:")
    T = V_T
    proj_phase(False, "mq")
    I("s_branch att_pro")
    P.L("mq_z:")
    P.L("m_fin:")
    if DIAG:
        ST(7); I("s_waitcnt vmcnt(0)"); ST(8); ST.dump(66, S_W)
    P.L("m_end:"); I("s_endpgm"); P.L("m_z:")

    att = [("att_pro:", "att_j:", 1), ("att_l1:", "att_tail:", 1)]
    def tf():
        body = P.seg("att_l_:", "att_tail:")
        full = []
        for t in range(1, 8): full += [(x, t) for x in body]
        A = P.trace(att) + full + P.trace([("att_tail:", "att_chk:", 1)])
        out = []
        for pre, end in (("mg", "mg_done:"), ("mq", "mq_z:")):
            tr = P.trace([("m_a:", "mg_pre:", 1), (f"{pre}_pre:", f"{pre}_loop_:", 1), (f"{pre}_loop_:", f"{pre}_tail:", 3), (f"{pre}_tail:", end, 1)]) + A
            out.append(tr + P.trace([("att_chk:", "fb_a:", 1), ("m_fin:", "m_z:", 1)]))
        out.append(out[0][:-len(P.seg("m_fin:", "m_z:"))] + P.trace([("fb_a:", "fb_loop:", 1), ("fb_loop:", "fb_b:", 3), ("fb_b:", "fb_z:", 1)]) + A)
        return out
    finish(P, tf, "main")
    return P

def gen_post():
    P = Prog(); I = P.I
    header(P, "post_kernel"); P.L("p_a:")
    S_WD, S_WO, S_HH, S_OO, S_X, S_OUT = 8, 12, 16, 20, 24, 28
    SW, SRT, SNT, SM0, SWO, SBO = 32, 33, 34, 35, 36, 37
    V_W, V_BH, V_BO, V_A, VL, T = 1, 5, 9, 13, 17, 18
    ACC_D, ACC_S = 64, 128
    A_B, A_A = 0, 128
    I("s_cmp_ge_u32 s2, 256\ns_cbranch_scc1 p_end")
    ST = Stamper(P, 2); ST(0)
    I("""s_load_dwordx2 s[60:61], s[0:1], 0
    s_load_dwordx2 s[62:63], s[0:1], 32
    s_load_dwordx4 s[64:67], s[0:1], 64
    s_load_dwordx2 s[68:69], s[0:1], 88""")
    I(f"""v_lshrrev_b32 v1, 6, v0
    v_and_b32 v0, 63, v0
    s_and_b32 s3, s2, 7
    v_readfirstlane_b32 s{SW}, v1
    s_lshr_b32 s4, s2, 3
    s_and_b32 s5, s4, 3
    s_lshl_b32 s3, s3, 2
    s_add_u32 s{SRT}, s3, s5
    s_lshr_b32 s{SNT}, s4, 2
    v_lshlrev_b32 v{VL}, 4, v0
    v_lshrrev_b32 v{T}, 3, v0
    v_and_b32 v{T+1}, 7, v0
    v_and_b32 v{T+2}, 6, v{T}
    v_xor_b32 v{T+1}, v{T+1}, v{T+2}
    v_lshlrev_b32 v{T+1}, 4, v{T+1}
    v_lshl_add_u32 v{V_W}, v{T}, 10, v{T+1}""")
    for n in range(1, 4): I(f"v_add_u32 v{V_W+n}, {n*(8192-1024)}, v{V_W}")
    for qb in range(4):
        I(f"s_xor_b32 s3, s{SW}, {qb}\ns_mul_i32 s4, s3, {H_RB}\ns_lshl_b32 s5, s3, 17\nv_add_u32 v{V_BH+qb}, s4, v{VL}\nv_add_u32 v{V_BO+qb}, s5, v{VL}")
    I("s_waitcnt lgkmcnt(0)")
    I(f"s_lshl_b32 s3, s{SNT}, 7\ns_sub_u32 s4, {1792*1024}, s3\ns_sub_u32 s5, {4096*1024}, s3")
    srd(P, S_WD, 64, "s3", "s4"); srd(P, S_HH, 68, WS_H, SZ_H)
    srd(P, S_WO, 62, "s3", "s5"); srd(P, S_OO, 68, WS_O, SZ_O)
    I(f"s_lshl_b32 s{SM0}, s{SW}, 15")
    steps = [("d", i) for i in range(7)] + [("s", i) for i in range(16)]
    def issue(n):
        kind, i = steps[n]; slot = n & 3; out = []
        if i == 0:
            if kind == "d":
                out += [Ins(f"s_mul_i32 s{SWO}, s{SW}, {7*65536}"), Ins(f"s_mul_i32 s{SBO}, s{SRT}, {4*H_RB}"), Ins(f"s_mul_i32 s3, s{SW}, {7*2048}"), Ins(f"s_add_u32 s{SBO}, s{SBO}, s3")]
            else:
                out += [Ins(f"s_lshl_b32 s{SWO}, s{SW}, 20"), Ins(f"s_lshl_b32 s{SBO}, s{SRT}, 19"), Ins(f"s_lshl_b32 s3, s{SW}, 15"), Ins(f"s_add_u32 s{SBO}, s{SBO}, s3")]
        sw, sb, vb = (S_WD, S_HH, V_BH) if kind == "d" else (S_WO, S_OO, V_BO)
        for hf in range(2):
            out += [Ins(f"s_add_u32 m0, s{SM0}, {slot*8192 + hf*4096}")]
            ld = [Ins(f"buffer_load_dwordx4 {ar(A_B + slot*32 + qb*8 + hf*4)}, v{vb+qb}, {sr(sb)}, s{SBO} offen offset:{hf*1024}") for qb in range(4)]
            dm = [Ins(f"buffer_load_dwordx4 v{V_W+k}, {sr(sw)}, s{SWO} offen offset:{k*1024} lds", dma=("p_W", n, 0, ("P", slot))) for k in range(4)]
            out += [ld[0]] + dm + ld[1:] + [Ins(f"s_add_u32 s{SWO}, s{SWO}, 32768")]
        out += [Ins(f"s_add_u32 s{SBO}, s{SBO}, 2048")]
        return out
    for n in range(3):
        for x in issue(n): P.add(x)
    srd(P, S_X, 60, 0, 0x200000); srd(P, S_OUT, 66, 0, 0x200000)
    I(f"""v_lshrrev_b32 v{T+2}, 2, v0
    v_and_b32 v{T+3}, 6, v{T+2}
    v_bfe_u32 v{T+4}, v0, 1, 1
    v_xor_b32 v{T+5}, v{T+3}, v{T+4}
    v_and_b32 v{T+7}, 1, v0
    v_lshlrev_b32 v{T+6}, 7, v{T+2}
    v_lshl_add_u32 v{T+6}, v{T+7}, 3, v{T+6}
    v_add_u32 v{T+6}, s{SM0}, v{T+6}""")
    for nb in range(4): I(f"v_xor_b32 v{T+8}, {2*nb}, v{T+5}\nv_lshl_add_u32 v{V_A+nb}, v{T+8}, 4, v{T+6}")
    def rd(n, nb, k):
        ks, half = k >> 1, k & 1
        return Ins(f"ds_read_b64_tr_b16 {ar(A_A + nb*8 + ks*4 + half*2, 2)}, v{V_A+nb} offset:{(n&3)*8192 + ks*4096 + half*2048}", rd=("p_W", n, 0, ("P", n & 3)))
    ST(1)
    P.add(WV())
    ST(2)
    for nb in range(2):
        for k in range(4): P.add(rd(0, nb, k))
    P.add(WL())
    for n, (kind, i) in enumerate(steps):
        acc = ACC_D if kind == "d" else ACC_S
        mf = []
        for j in range(32):
            nb, qb, k = j >> 3, (j >> 1) & 3, j & 1; ks = k if qb % 2 == 0 else 1 - k
            a = vr(acc + (nb * 4 + qb) * 4)
            mf.append(Ins(f"{MF} {a}, {ar(A_A + nb*8 + ks*4)}, {ar(A_B + (n&3)*32 + qb*8 + ks*4)}, {'0' if (i==0 and k==0) else a}"))
        G = Gaps(32)
        for nb in range(4):
            if nb < 2:
                for k in range(4): G.put(nb * 8 + k // 2, "D", rd(n, nb + 2, k))
            elif n + 1 < len(steps):
                for k in range(4): G.put(nb * 8 + k // 2, "D", rd(n + 1, nb - 2, k))
            G.scal(nb * 8 + 7, WL())
        if n + 1 < len(steps): G.scal(15, WV())
        if n + 3 < len(steps):
            free = [g for g in range(32) if g % 8 >= 2]
            fi = 0
            for x in issue(n + 3):
                if x.kind == "vmem": G.put(free[fi], "M", x, force=True); fi += 1
                else: G.scal(free[fi], x)
        emit_gaps(P, mf, G)
        if n == 6: ST(3)
        if n == 14: ST(4)
    ST(5)
    I(f"""s_lshl_b32 s3, s{SRT}, 2
    s_add_u32 s3, s3, s{SW}
    s_lshl_b32 s3, s3, 14
    s_lshl_b32 s4, s{SNT}, 7
    s_add_u32 s3, s3, s4
    v_and_b32 v{T}, 15, v0
    v_lshrrev_b32 v{T+1}, 4, v0
    v_lshlrev_b32 v{T+1}, 3, v{T+1}
    v_lshl_add_u32 v{T}, v{T}, 10, v{T+1}""")
    XR = 32
    for nb in range(4): I(f"buffer_load_dwordx2 {vr(XR+2*nb,2)}, v{T}, {sr(S_X)}, s3 offen offset:{32*nb}")
    I("s_barrier")
    for qb in range(1, 4):
        I(f"s_xor_b32 s4, s{SW}, {qb}\ns_mul_i32 s4, s4, 24576\ns_add_u32 s4, s4, {(qb-1)*8192}\nv_add_u32 v{T+1+qb}, s4, v{VL}")
        for m, acc in enumerate((ACC_D, ACC_S)):
            for nb in range(4): I(f"ds_write_b128 v{T+1+qb}, {vr(acc + (nb*4+qb)*4)} offset:{(m*4+nb)*1024}")
    I(f"s_mul_i32 s4, s{SW}, 24576\nv_add_u32 v{T+1}, s4, v{VL}\ns_waitcnt lgkmcnt(0)\ns_barrier")
    for j in range(3):
        for m, acc in enumerate((ACC_D, ACC_S)):
            for nb in range(4): I(f"ds_read_b128 {vr(acc + (nb*4+1+j)*4)}, v{T+1} offset:{j*8192 + (m*4+nb)*1024}")
        I("s_waitcnt lgkmcnt(0)")
    for acc in (ACC_D, ACC_S):
        for nb in range(4):
            b = acc + nb * 16
            for r in range(4): I(f"v_add_f32 v{b+r}, v{b+r}, v{b+4+r}\nv_add_f32 v{b+8+r}, v{b+8+r}, v{b+12+r}")
            for r in range(4): I(f"v_add_f32 v{b+r}, v{b+r}, v{b+8+r}")
    I(f"s_mov_b32 s4, {hex(f2u(1/(CSC*CSC)))}\ns_mov_b32 s5, {hex(f2u(-math.log2(math.e)))}\ns_waitcnt vmcnt(0)")
    for nb in range(4):
        d = ACC_D + nb * 16; s = ACC_S + nb * 16
        for r in range(4): I(f"v_mul_f32 v{d+r}, s4, v{d+r}")
        for r in range(4): I(f"v_mul_f32 v{d+4+r}, s5, v{d+r}")
        for r in range(4): I(f"v_exp_f32 v{d+4+r}, v{d+4+r}")
        for r in range(4): I(f"v_add_f32 v{d+4+r}, 1.0, v{d+4+r}")
        for r in range(4): I(f"v_rcp_f32 v{d+4+r}, v{d+4+r}")
        for r in range(2): I(f"v_lshlrev_b32 v{d+8+2*r}, 16, v{XR+2*nb+r}\nv_and_b32 v{d+9+2*r}, 0xffff0000, v{XR+2*nb+r}")
        for r in range(4): I(f"v_mul_f32 v{d+r}, v{d+r}, v{d+4+r}")
        for r in range(4): I(f"v_fmac_f32 v{d+8+r}, v{d+r}, v{s+r}")
        for r in range(2): I(f"v_cvt_pk_bf16_f32 v{d+12+r}, v{d+8+2*r}, v{d+9+2*r}")
        I(f"buffer_store_dwordx2 {vr(d+12,2)}, v{T}, {sr(S_OUT)}, s3 offen offset:{32*nb}")
    if DIAG:
        ST(6); I("s_waitcnt vmcnt(0)"); ST(7); ST.dump(68, SW)
    P.L("p_end:"); I("s_endpgm"); P.L("p_z:")
    tf = lambda: [P.trace([("p_a:", "p_z:", 1)])]
    finish(P, tf, "post")
    return P

def build(path):
    ref = open(f"cdna_kernels/{KN}.s.ref").read().split("\n")
    head = [l for l in ref if l.startswith(";") and "@launch" not in l and "Override launch" not in l and "grid=ceil" not in l]
    out = "\n".join(head) + "\n"
    out += "; @launch kernel=ln_kernel grid=(256,1,1) block=(256,1,1) lds=0\n"
    out += "; @launch kernel=main_kernel grid=(256,1,1) block=(256,1,1) lds=163840\n"
    out += "; @launch kernel=post_kernel grid=(256,1,1) block=(256,1,1) lds=131072\n"
    out += '.amdgcn_target "amdgcn-amd-amdhsa--gfx950"\n.text\n'
    out += gen_ln().text() + gen_main().text() + gen_post().text()
    out += '.section .rodata,"a"\n' + descriptor("ln_kernel", 40, 40, 48) + descriptor("main_kernel", 512, 256) + descriptor("post_kernel", 512, 256)
    open(path, "w").write(out)

if __name__ == "__main__":
    if "diag" in sys.argv[2:]: DIAG = 1
    if "diag2" in sys.argv[2:]: DIAG = 2
    build(sys.argv[1] if len(sys.argv) > 1 else f"cdna_kernels/{KN}.s")
```

```python
import math, struct, sys
from asmlib import *

KN = "recurrent_scan__mha_block_cached__glu_gated_bilinear__prompt"
def f2u(x): return struct.unpack("<I", struct.pack("<f", x))[0]
CSC = math.log2(math.e) / math.sqrt(128.0)
WS_XN, WS_H, WS_O = 0, 0x400000, 0x1000000
SZ_XN, SZ_H, SZ_O = 0x200000, 0x700000, 0x1000000
H_RB, O_RB, X_RB = 56 * 1024, 128 * 1024, 16 * 1024
MF = "v_mfma_f32_16x16x32_bf16"
def vr(b, n=4): return f"v[{b}:{b+n-1}]"
def ar(b, n=4): return f"a[{b}:{b+n-1}]"
def sr(b, n=4): return f"s[{b}:{b+n-1}]"

def srd(P, d, ptr, off, size):
    if off == 0:
        P.I(f"s_mov_b32 s{d}, s{ptr}\ns_mov_b32 s{d+1}, s{ptr+1}")
    else:
        P.I(f"s_add_u32 s{d}, s{ptr}, {off}\ns_addc_u32 s{d+1}, s{ptr+1}, 0")
    P.I(f"s_mov_b32 s{d+2}, {size}\ns_mov_b32 s{d+3}, 0x00020000")

DIAG = False
PREF_LN = True
PREF_POST = True
STAMP0 = 72
LASTK = 2
class Stamper:
    def __init__(self, P, kid): self.P = P; self.kid = kid; self.n = 0
    def __call__(self, n):
        if not DIAG: return
        self.n = max(self.n, n + 1)
        self.P.I(f"s_memtime s[96:97]\ns_memrealtime s[98:99]\ns_waitcnt lgkmcnt(0)\ns_mov_b32 s{STAMP0+2*n}, s96\ns_mov_b32 s{STAMP0+2*n+1}, s98")
    def dump(self, wsptr, wave):
        if not DIAG: return
        I = self.P.I
        if DIAG == 2:
            I(f"s_load_dwordx2 s[96:97], s[0:1], {80 if self.kid == LASTK else 88}\ns_waitcnt lgkmcnt(0)\ns_add_u32 s92, s96, {0 if self.kid == LASTK else 0x3000000}\ns_addc_u32 s93, s97, 0\ns_mov_b32 s95, 0x00020000")
            I(f"s_add_u32 s96, s2, s{wave}\ns_cmp_eq_u32 s96, 0\ns_cselect_b32 s94, 64, 0\nv_mov_b32 v2, 0")
            sel = {1: [0, 2, 3, 4, 5, 8], 2: [0, 2, 3, 5, 7]}[self.kid]; base = {1: 1, 2: 9}[self.kid]
            for j, i in enumerate(sel): I(f"v_mov_b32 v3, s{STAMP0+2*i+1}\nbuffer_store_dword v3, v2, s[92:95], 0 offen offset:{4*(base+j)}")
            if self.kid == LASTK:
                I("s_load_dwordx2 s[96:97], s[0:1], 88\ns_waitcnt lgkmcnt(0)\ns_add_u32 s88, s96, 0x3000000\ns_addc_u32 s89, s97, 0\ns_mov_b32 s90, 64\ns_mov_b32 s91, 0x00020000")
                I(f"buffer_load_dwordx4 v[4:7], v2, s[88:91], 0 offen\nbuffer_load_dwordx4 v[8:11], v2, s[88:91], 0 offen offset:16\ns_waitcnt vmcnt(0)")
                for j in range(base): I(f"buffer_store_dword v{4+min(j,7)}, v2, s[92:95], 0 offen offset:{4*j}")
            if self.kid == 1: I(f"s_sub_u32 s96, s{STAMP0+10}, s{STAMP0+8}\nv_mov_b32 v3, s96\nbuffer_store_dword v3, v2, s[92:95], 0 offen offset:{4*7}")
            return
        I(f"s_load_dwordx2 s[96:97], s[0:1], 88\ns_waitcnt lgkmcnt(0)\ns_add_u32 s92, s96, {0x3000000 + self.kid*0x40000}\ns_addc_u32 s93, s97, 0\ns_mov_b32 s94, 0x40000\ns_mov_b32 s95, 0x00020000")
        I(f"s_lshl_b32 s96, s2, 2\ns_add_u32 s96, s96, s{wave}\ns_lshl_b32 s96, s96, 7\nv_mov_b32 v2, s96")
        for i in range(2 * self.n): I(f"v_mov_b32 v3, s{STAMP0+i}\nbuffer_store_dword v3, v2, s[92:95], 0 offen offset:{4*i}")

def header(P, name):
    P.L(f".globl {name}\n.p2align 8\n.type {name},@function\n{name}:")

def descriptor(name, vgpr, accum, sgpr=102):
    return f""".p2align 6
.amdhsa_kernel {name}
  .amdhsa_next_free_vgpr {vgpr}
  .amdhsa_next_free_sgpr {sgpr}
  .amdhsa_accum_offset {accum}
  .amdhsa_group_segment_fixed_size 0
  .amdhsa_kernarg_size 96
  .amdhsa_user_sgpr_count 2
  .amdhsa_user_sgpr_kernarg_segment_ptr 1
  .amdhsa_system_sgpr_workgroup_id_x 1
.end_amdhsa_kernel
"""

def red32(P, v, t):
    for m in ("quad_perm:[1,0,3,2]", "quad_perm:[2,3,0,1]", "row_half_mirror", "row_mirror"):
        P.I(f"v_add_f32_dpp v{v}, v{v}, v{v} {m} row_mask:0xf bank_mask:0xf")
    P.I(f"v_mov_b32 v{t}, v{v}\nv_permlane16_swap_b32 v{v}, v{t}\nv_add_f32 v{v}, v{v}, v{t}")

def gen_ln():
    P = Prog(); I = P.I
    header(P, "ln_kernel"); P.L("ln_a:")
    I("s_cmp_ge_u32 s2, 256\ns_cbranch_scc1 ln_end")
    if DIAG == 2:
        I("s_memrealtime s[40:41]\ns_load_dwordx2 s[44:45], s[0:1], 88\ns_waitcnt lgkmcnt(0)\ns_add_u32 s44, s44, 0x3000000\ns_addc_u32 s45, s45, 0\ns_cmp_eq_u32 s2, 0\ns_cselect_b32 s46, 4, 0\ns_mov_b32 s47, 0x00020000\nv_mov_b32 v2, 0\nv_mov_b32 v3, s40\nbuffer_store_dword v3, v2, s[44:47], 0 offen\ns_waitcnt vmcnt(0)")
    I("s_load_dwordx2 s[4:5], s[0:1], 0\ns_load_dwordx2 s[6:7], s[0:1], 88")
    I("""v_lshrrev_b32 v1, 5, v0
    s_lshl_b32 s3, s2, 3
    v_add_u32 v1, s3, v1
    v_and_b32 v2, 31, v0
    v_lshlrev_b32 v3, 10, v1
    v_lshl_add_u32 v3, v2, 4, v3
    s_waitcnt lgkmcnt(0)""")
    srd(P, 8, 4, 0, 0x200000); srd(P, 12, 6, WS_XN, SZ_XN)
    I("buffer_load_dwordx4 v[8:11], v3, s[8:11], 0 offen\nbuffer_load_dwordx4 v[12:15], v3, s[8:11], 0 offen offset:512")
    if PREF_LN:
        I("s_load_dwordx4 s[16:19], s[0:1], 8\ns_load_dwordx2 s[20:21], s[0:1], 24\ns_load_dwordx4 s[24:27], s[0:1], 48")
        I("s_lshl_b32 s3, s2, 8\nv_add_u32 v32, s3, v0\nv_lshlrev_b32 v33, 6, v32\nv_and_b32 v33, 0xffffff80, v33\ns_waitcnt lgkmcnt(0)")
        srd(P, 28, 20, 0, 0x400000)
        I("buffer_load_dword v34, v33, s[28:31], 0 offen")
        I("""s_lshr_b32 s4, s2, 5
        s_cmp_lt_u32 s4, 2
        s_cselect_b32 s32, s24, s26
        s_cselect_b32 s33, s25, s27
        s_cmp_eq_u32 s4, 4
        s_cselect_b32 s32, s16, s32
        s_cselect_b32 s33, s17, s33
        s_cmp_eq_u32 s4, 5
        s_cselect_b32 s32, s18, s32
        s_cselect_b32 s33, s19, s33
        s_and_b32 s3, s2, 63
        s_lshl_b32 s3, s3, 15
        s_and_b32 s5, s2, 31
        s_lshl_b32 s5, s5, 19
        s_cmp_lt_u32 s4, 4
        s_cselect_b32 s3, s3, s5""")
        I(f"s_mov_b32 s34, 0x1000000\ns_cselect_b32 s34, {512*3584}, s34\ns_cmp_lt_u32 s4, 6\ns_cselect_b32 s34, s34, 0\ns_mov_b32 s35, 0x00020000")
        I("v_lshlrev_b32 v35, 7, v0\nbuffer_load_dword v36, v35, s[32:35], s3 offen")
    I("""v_lshrrev_b32 v4, 4, v1
    v_lshlrev_b32 v4, 14, v4
    v_and_b32 v5, 15, v1
    v_lshl_add_u32 v4, v5, 4, v4
    v_lshrrev_b32 v5, 2, v2
    v_lshl_add_u32 v4, v5, 10, v4
    v_and_b32 v5, 1, v2
    v_lshl_add_u32 v4, v5, 9, v4
    v_bfe_u32 v5, v2, 1, 1
    v_lshl_add_u32 v4, v5, 3, v4
    v_add_u32 v5, 8192, v4""")
    I("s_waitcnt vmcnt(2)" if PREF_LN else "s_waitcnt vmcnt(0)")
    for i in range(8):
        I(f"v_lshlrev_b32 v{16+2*i}, 16, v{8+i}\nv_and_b32 v{17+2*i}, 0xffff0000, v{8+i}")
    I("v_add_f32 v6, v16, v17")
    for i in range(2, 16): I(f"v_add_f32 v6, v6, v{16+i}")
    red32(P, 6, 7)
    I(f"v_mul_f32 v6, {hex(f2u(1/512))}, v6")
    for i in range(16): I(f"v_sub_f32 v{16+i}, v{16+i}, v6")
    I("v_mul_f32 v6, v16, v16")
    for i in range(1, 16): I(f"v_fmac_f32 v6, v{16+i}, v{16+i}")
    red32(P, 6, 7)
    I(f"v_mov_b32 v7, {hex(f2u(1e-5))}\nv_fmac_f32 v7, {hex(f2u(1/512))}, v6\nv_rsq_f32 v7, v7")
    I(f"v_mul_f32 v7, {hex(f2u(CSC))}, v7")
    for i in range(16): I(f"v_mul_f32 v{16+i}, v{16+i}, v7")
    for i in range(8): I(f"v_cvt_pk_bf16_f32 v{8+i}, v{16+2*i}, v{17+2*i}")
    I("""buffer_store_dwordx2 v[8:9], v4, s[12:15], 0 offen
    buffer_store_dwordx2 v[10:11], v4, s[12:15], 0 offen offset:256
    buffer_store_dwordx2 v[12:13], v5, s[12:15], 0 offen
    buffer_store_dwordx2 v[14:15], v5, s[12:15], 0 offen offset:256""")
    P.L("ln_end:"); I("s_endpgm"); P.L("ln_z:")
    tf = lambda: [P.trace([("ln_a:", "ln_z:", 1)])]
    finish(P, tf, "ln")
    return P

def finish(P, tf, name, quiet=False):
    solve_waits(tf())
    ins = fix_hazards(P, tf)
    solve_waits(tf())
    assert not sum((find_hazards(t) for t in tf()), [])
    errs = sum((check_mem(t) for t in tf()), [])
    if errs:
        for e in errs[:30]: print("MEMERR", name, e, file=sys.stderr)
        raise SystemExit(1)
    if not quiet:
        print(f"{name}: {sum(isinstance(x, Ins) for x in P.items)} instrs, {len(ins)} nops inserted", file=sys.stderr)
    return ins

class Gaps:
    def __init__(self, n, modulo=False):
        self.n = n; self.mod = modulo
        self.sc = [[] for _ in range(n)]; self.vec = [[] for _ in range(n)]
    def ix(self, g): return g % self.n if self.mod else g
    def cost(self, g): return sum(2 if k in "EM" else 1 for k, _ in self.vec[self.ix(g)])
    def has(self, g, kinds):
        if not self.mod and not (0 <= g < self.n): return False
        return any(k in kinds for k, _ in self.vec[self.ix(g)])
    def fits(self, g, k):
        c = self.cost(g)
        if k in "EM":
            if c: return False
            if k == "E" and (self.has(g - 1, "M") or self.has(g + 1, "M")): return False
            if k == "M" and (self.has(g - 1, "E") or self.has(g + 1, "E") or self.cost(g-1) == 2 and self.has(g - 1, "V")): return False
            return True
        if c >= 2: return False
        if k == "V" and c == 1 and self.has(g + 1, "M"): return False
        return True
    def put(self, g, k, item, force=False):
        assert force or self.fits(g, k), (g, k, self.vec[self.ix(g)])
        v = self.vec[self.ix(g)]
        if k == "D":
            i = 0
            while i < len(v) and v[i][0] == "D": i += 1
            v.insert(i, (k, item))
        else: v.append((k, item))
        return g
    def first(self, g0, k, item, g1=None):
        g = g0
        lim = (g0 + self.n) if self.mod else self.n
        while g < lim and not self.fits(g, k): g += 1
        if g >= lim or (g1 is not None and g > g1):
            g = min(g1 if g1 is not None else self.n - 1, lim - 1); return self.put(max(g, min(g0, lim - 1)), k, item, force=True)
        return self.put(g, k, item)
    def scal(self, g, item):
        self.sc[self.ix(g)].append(item); return g
    def sfirst(self, g0, item, back=False):
        g = g0
        while self.sc[self.ix(g)] and (self.mod or 0 < g < self.n - 1): g += -1 if back else 1
        return self.scal(g, item)

def emit_gaps(P, mf, G, lo=0, hi=None, res=lambda it: it):
    hi = G.n if hi is None else hi
    for g in range(lo, hi):
        if mf[g] is not None: P.add(mf[g])
        for it in G.sc[g] + [it for _, it in G.vec[g]]:
            r = res(it)
            if r is None: continue
            for x in (r if isinstance(r, list) else [r]): P.add(x)

def WL(): return Ins("s_waitcnt lgkmcnt(0)", wait=dict(kind="lgkm", n=None, drop=True))
def WV(kind="vm"): return Ins("s_waitcnt vmcnt(0)", wait=dict(kind=kind, n=None, drop=True))

S_K, S_V, S_WQ, S_WG, S_WU, S_XN, S_H, S_O = 8, 12, 16, 20, 24, 28, 32, 36
S_W, S_HD, S_QB = 40, 41, 42
S_W4K = 43
S_KOFF, S_VOFF = 44, 45
S_WQO, S_GUO, S_XO = 46, 47, 48
S_M0Q, S_M0G = 49, 50
S_CNT, S_PASS, S_T0, S_T1 = 51, 52, 53, 54
S_W2K = 55
V_KV = 1
V_KA = 5
V_VA = 9
V_IDX = 17
V_L16 = 18
V_WQ = 19
V_GU = 23
V_XO = 25
V_QA = 29
V_GA = 33
V_T = 37
V_L = 32
V_CI = 48
V_P = 64
V_S = 128
V_Q = 192
A_O, A_K, A_V, A_ONE = 0, 128, 192, 224
A_X, A_G = 0, 64
LA, LK, LB, LV = 0, 16384, 81920, 98304
def kaddr(i): return ((i + 3) & 3) * 16384
NIT = 132

def att_mfmas(pbuf, do_qk, do_pv, first_pv, smf_first=False):
    mf = []
    for g in range(64):
        kb, qb, k = g >> 4, (g >> 2) & 3, g & 3
        ds = k if (g >> 2) % 2 == 0 else 3 - k
        s = V_S + (kb * 4 + qb) * 4
        c = vr(V_CI + 4 * qb) if k == 0 else vr(s)
        mf.append(Ins(f"{MF} {vr(s)}, {ar(A_K + kb*16 + ds*4)}, {vr(V_Q + (ds*4+qb)*4)}, {c}") if do_qk else None)
    pv = []
    for j in range(64):
        db, qb, k = j >> 3, (j >> 1) & 3, j & 1
        ks = k if qb % 2 == 0 else 1 - k
        o = A_O + (db * 4 + qb) * 4
        c = "0" if (first_pv and k == 0) else ar(o)
        pv.append(Ins(f"{MF} {ar(o)}, {ar(A_V + (db&3)*8 + ks*4)}, {vr(V_P + pbuf*32 + qb*8 + ks*4)}, {c}"))
    smf = [Ins(f"v_smfmac_f32_16x16x64_bf16 {vr(V_L+4*qb)}, {ar(A_ONE)}, {vr(V_P + pbuf*32 + qb*8, 8)}, v{V_IDX}") for qb in range(4)]
    seq = smf + pv
    mf += seq if do_pv else [None] * 68
    return mf
PV0 = 68

def att_table():
    G = Gaps(NIT, modulo=True)
    G.scal(62, ("vmw",)); G.scal(63, ("bar",))
    dm = [65, 66, 67, 69, 71, 73, 75, 77]
    for n in range(4): G.put(dm[n], "M", ("dmav", n))
    for n in range(4): G.put(dm[4 + n], "M", ("dmak", n))
    G.scal(64, ("m0v",)); G.scal(70, ("m0k",)); G.scal(78, ("adv",)); G.scal(79, ("adk",))
    def vread(db, gs):
        for i, g in enumerate(gs):
            G.put(g, "D", ("vrd", db, i))
    vread(2, [68, 68, 70, 70]); vread(3, [76, 76, 78, 78])
    for db in range(4, 8):
        b = PV0 + 8 * (db - 2); vread(db, [b, b + 2, b + 4, b + 5])
    vread(0, [44, 46, 48, 50]); vread(1, [52, 54, 56, 58])
    for i in range(4): G.put(116 + 2 * i, "D", ("krd", 0, i, 1))
    for i in range(4): G.put(124 + 2 * i, "D", ("krd", 1, i, 1))
    for i in range(4): G.put(0 + i, "D", ("krd", 2, i, 0))
    for i in range(4): G.put(4 + i, "D", ("krd", 3, i, 0))
    for g in (131, 15, 31, 47): G.sfirst(g, ("lgw",), back=True)
    for db in range(8): G.sfirst(PV0 + 8 * db - 1, ("lgw",), back=True)
    eg = []; g = 0
    for e in range(64):
        g = max(g, 4 * (e >> 2) + 8)
        while not G.fits(g, "E"): g += 1
        G.put(g, "E", ("exp", e, g // NIT)); eg.append(g)
    g = 0
    for c in range(32):
        g = max(g, eg[2 * c + 1] + 1)
        while not G.fits(g, "V"): g += 1
        assert g < NIT + 4 * (c >> 1), (c, g)
        G.put(g, "V", ("cvt", c, g // NIT))
    return G

def att_res(it, i, trip_stride, have):
    w = it[0]
    tg = lambda nm, t, base: (nm, t, trip_stride, base + kaddr(t))
    if w == "vmw": return WV("vmbar")
    if w == "bar": return Ins("s_barrier")
    if w == "lgw": return WL()
    if w == "m0v": return Ins(f"s_add_u32 m0, s{S_W4K}, {LV + kaddr(i+3)}") if have("dmav", i + 3) else None
    if w == "m0k": return Ins(f"s_add_u32 m0, s{S_W4K}, {LK + kaddr(i+5)}") if have("dmak", i + 5) else None
    if w == "adv": return Ins(f"s_add_u32 s{S_VOFF}, s{S_VOFF}, 16384") if have("dmav", i + 3) else None
    if w == "adk": return Ins(f"s_add_u32 s{S_KOFF}, s{S_KOFF}, 16384") if have("dmak", i + 5) else None
    if w == "dmav":
        return Ins(f"buffer_load_dwordx4 v{V_KV+it[1]}, {sr(S_V)}, s{S_VOFF} offen offset:{1024*it[1]} lds", dma=tg("V", i + 3, LV)) if have("dmav", i + 3) else None
    if w == "dmak":
        return Ins(f"buffer_load_dwordx4 v{V_KV+it[1]}, {sr(S_K)}, s{S_KOFF} offen offset:{1024*it[1]} lds", dma=tg("K", i + 5, LK)) if have("dmak", i + 5) else None
    if w == "vrd":
        db, k = it[1], it[2]; ks, half = k >> 1, k & 1
        if not have("vrd", i): return None
        return Ins(f"ds_read_b64_tr_b16 {ar(A_V + (db&3)*8 + ks*4 + half*2, 2)}, v{V_VA+db} offset:{kaddr(i) + ks*8192 + half*4096}", rd=tg("V", i, LV))
    if w == "krd":
        kb, ds, t = it[1], it[2], i + 1 + it[3]
        if not have("krd", t): return None
        return Ins(f"ds_read_b128 {ar(A_K + kb*16 + ds*4)}, v{V_KA+ds} offset:{kaddr(t) + kb*4096}", rd=tg("K", t, LK))
    if w == "exp":
        t = i + 1 - it[2]
        return Ins(f"v_exp_f32 v{V_S+it[1]}, v{V_S+it[1]}") if have("exp", t) else None
    if w == "cvt":
        c, t = it[1], i + 1 - it[2]
        if not have("exp", t): return None
        n = c >> 1; kb, qb = n >> 2, n & 3
        d = V_P + (t & 1) * 32 + qb * 8 + (kb >> 1) * 4 + (kb & 1) * 2 + (c & 1)
        return Ins(f"v_cvt_pk_bf16_f32 v{d}, v{V_S+2*c}, v{V_S+2*c+1}")
    raise ValueError(w)

def proj_step(P, t, gu, rolled, last):
    blks = ([("G", 0), ("U", 0), ("G", 1), ("U", 1), ("G", 2), ("U", 2), ("G", 3), ("U", 3)] if gu else []) + \
           [(m, ds) for ds in range(4) for m in "XY"]
    nb = len(blks); N = nb * 8
    stride = 2 if rolled else 0
    xb = A_X + (t & 1) * 32
    def acc(b, qb):
        m, i = b
        return {"G": ar(A_G + (i * 4 + qb) * 4), "U": vr(V_P + (i * 4 + qb) * 4),
                "X": vr(V_Q + (i * 4 + qb) * 4), "Y": vr(V_S + (i * 4 + qb) * 4)}[m]
    mf = []
    for bi, b in enumerate(blks):
        for j in range(8):
            qb, k = j >> 1, j & 1; ks = k if qb % 2 == 0 else 1 - k
            mf.append(Ins(f"{MF} {acc(b,qb)}, {ar(A_V + (bi&3)*8 + ks*4)}, {ar(xb + qb*8 + ks*4)}, {acc(b,qb)}"))
    G = Gaps(N)
    def rd(b, k, tt, dst):
        m, i = b; ks, half = k >> 1, k & 1
        so = (tt & 1) * 16384 if rolled else (tt & 3) * 16384 - (t & 2) * 16384 * 0
        so = (tt & 1) * 16384
        if m in "XY":
            return Ins(f"ds_read_b64_tr_b16 {ar(dst + ks*4 + half*2, 2)}, v{V_QA+i} offset:{so + ks*8192 + half*4096 + (8 if m=='Y' else 0)}", rd=("WQ", tt, stride, ("A", None)))
        return Ins(f"ds_read_b64_tr_b16 {ar(dst + ks*4 + half*2, 2)}, v{V_GA+i} offset:{so + (8192 if m=='U' else 0) + ks*4096 + half*2048}", rd=("GU", tt, stride, ("B", None)))
    toggles = []
    for bi in range(nb):
        nxt = bi + 2
        if nxt < nb:
            for k in range(4): G.put(bi * 8 + k, "D", rd(blks[nxt], k, t, A_V + (nxt & 3) * 8))
        elif not last:
            for k in range(4): G.put(bi * 8 + k, "D", rd(blks[nxt - nb], k, t + 1, A_V + (nxt & 3) * 8))
        G.scal(bi * 8 + 7, WL())
    if t & 1 and not last:
        for i in range(4):
            lastq = (nb - 8 + 2 * i + 1 - 2) * 8 + 3
            if gu:
                G.first(max(lastq + 1, 0), "V", Ins(f"v_xor_b32 v{V_QA+i}, 0x8000, v{V_QA+i}"))
                lastg = max((2 * i + 1 - 2) * 8 + 3, -1)
                G.first(lastg + 1 + 4, "V", Ins(f"v_xor_b32 v{V_GA+i}, 0x8000, v{V_GA+i}"))
        if not gu:
            for i in (1, 2, 3): G.first((2 * i - 1) * 8 + 4, "V", Ins(f"v_xor_b32 v{V_QA+i}, 0x8000, v{V_QA+i}"))
            G.first(4, "V", Ins(f"v_xor_b32 v{V_QA}, 0x8000, v{V_QA}"))
    vm_gaps = [g for g in range(N) if g % 8 >= 4]
    if not last:
        xn = A_X + ((t + 1) & 1) * 32
        g = 0
        for n in range(8):
            qb, ks = n >> 1, n & 1
            g = G.first(max(g, vm_gaps[n]), "M", Ins(f"buffer_load_dwordx4 {ar(xn + qb*8 + ks*4)}, v{V_XO+qb}, {sr(S_XN)}, s{S_XO} offen offset:{ks*1024}"))
        G.sfirst(g + 1, Ins(f"s_add_u32 s{S_XO}, s{S_XO}, 2048"))
    B = N // 2
    G.scal(B, Ins("s_barrier"))
    after = [g for g in vm_gaps if g > B + 1]
    dmas = []
    if t <= 5:
        tt = t + 3
        dmas.append(("m0", f"s_mov_b32 m0, s{S_M0Q}"))
        for n in range(4): dmas.append(("d", Ins(f"buffer_load_dwordx4 v{V_WQ+n}, {sr(S_WQ)}, s{S_WQO} offen offset:{1024*n} lds", dma=("WQ", tt, stride, ("A", None)))))
        if gu:
            dmas.append(("m0", f"s_mov_b32 m0, s{S_M0G}"))
            for n in range(2): dmas.append(("d", Ins(f"buffer_load_dwordx4 v{V_GU+n}, {sr(S_WG)}, s{S_GUO} offen offset:{1024*n} lds", dma=("GU", tt, stride, ("B", None)))))
            dmas.append(("m0", f"s_add_u32 m0, s{S_M0G}, 8192"))
            for n in range(2): dmas.append(("d", Ins(f"buffer_load_dwordx4 v{V_GU+n}, {sr(S_WU)}, s{S_GUO} offen offset:{1024*n} lds", dma=("GU", tt, stride, ("B", None)))))
        post = [f"s_add_u32 s{S_WQO}, s{S_WQO}, {64*8192}", f"s_add_u32 s{S_M0Q}, s{S_M0Q}, 16384", f"s_and_b32 s{S_M0Q}, s{S_M0Q}, 0xffff"]
        if gu: post += [f"s_add_u32 s{S_GUO}, s{S_GUO}, {64*3584}", f"s_sub_u32 s{S_T0}, s{S_M0Q}, s{S_W2K}", f"s_add_u32 s{S_M0G}, s{S_T0}, {LB}"]
    else:
        kt = t - 5
        dmas.append(("m0", f"s_add_u32 m0, s{S_W4K}, {LK + kaddr(kt)}"))
        for n in range(4): dmas.append(("d", Ins(f"buffer_load_dwordx4 v{V_KV+n}, {sr(S_K)}, s{S_KOFF} offen offset:{1024*n} lds", dma=("K", kt, 0, LK + kaddr(kt)))))
        dmas.append(("m0", f"s_add_u32 m0, s{S_W4K}, {LV + kaddr(kt)}"))
        for n in range(4): dmas.append(("d", Ins(f"buffer_load_dwordx4 v{V_KV+n}, {sr(S_V)}, s{S_VOFF} offen offset:{1024*n} lds", dma=("V", kt, 0, LV + kaddr(kt)))))
        post = [f"s_add_u32 s{S_KOFF}, s{S_KOFF}, 16384", f"s_add_u32 s{S_VOFF}, s{S_VOFF}, 16384"]
    ai = 0; lastg = B
    for k, d in dmas:
        if k == "m0":
            if after[ai] - 1 <= lastg or G.sc[after[ai] - 1]: ai += 1
            while after[ai] - 1 <= lastg or G.sc[after[ai] - 1]: ai += 1
            G.scal(after[ai] - 1, Ins(d))
        else:
            while not G.fits(after[ai], "M"): ai += 1
            lastg = G.put(after[ai], "M", d); ai += 1
    g = lastg + 1
    for s in post: g = G.sfirst(g, Ins(s)) + 1
    if not last: G.sfirst(N - 2, WV("vmbar"), back=True)
    else: pass
    return mf, G, blks, acc

def gen_main():
    P = Prog(); I = P.I
    header(P, "main_kernel"); P.L("m_a:")
    I("s_cmp_ge_u32 s2, 256\ns_cbranch_scc1 m_end")
    ST = Stamper(P, 1); ST(0)
    I("""s_load_dwordx4 s[60:63], s[0:1], 8
    s_load_dwordx2 s[64:65], s[0:1], 24
    s_load_dwordx4 s[68:71], s[0:1], 48
    s_load_dwordx2 s[66:67], s[0:1], 88""")
    I(f"""v_lshrrev_b32 v1, 6, v0
    v_and_b32 v0, 63, v0
    s_and_b32 s3, s2, 7
    v_readfirstlane_b32 s{S_W}, v1
    s_lshr_b32 s4, s2, 3
    s_and_b32 s5, s4, 3
    s_lshl_b32 s3, s3, 2
    s_add_u32 s{S_HD}, s3, s5
    s_lshr_b32 s{S_QB}, s4, 2
    s_lshl_b32 s{S_W4K}, s{S_W}, 12
    s_lshl_b32 s{S_W2K}, s{S_W}, 11
    v_lshlrev_b32 v{V_L16}, 4, v0""")
    T = V_T
    I(f"v_lshrrev_b32 v{T}, 4, v0\nv_and_b32 v{T+1}, 15, v0")
    I(f"v_lshlrev_b32 v{T+2}, 1, v{T}\nv_xor_b32 v{T+2}, v{T+2}, v{T+1}")
    for n, fx in enumerate((0, 8, 9, 1)):
        I(f"""v_xor_b32 v{T+3}, {fx}, v{T+2}
        v_lshlrev_b32 v{T+3}, 4, v{T+3}
        v_lshl_add_u32 v{V_KV+n}, v{T}, 8, v{T+3}
        v_lshl_add_u32 v{V_WQ+n}, v{T}, 13, v{T+3}""")
        if n: I(f"v_add_u32 v{V_WQ+n}, {n*(4*8192-1024)}, v{V_WQ+n}")
    I("s_waitcnt lgkmcnt(0)")
    I(f"s_lshl_b32 s3, s{S_HD}, 8\ns_sub_u32 s4, 0x400000, s3")
    srd(P, S_WQ, 64, "s3", "s4")
    srd(P, S_XN, 66, WS_XN, SZ_XN)
    I(f"s_lshl_b32 s3, s{S_HD}, 7\ns_sub_u32 s4, {512*3584}, s3")
    srd(P, S_WG, 68, "s3", "s4"); srd(P, S_WU, 70, "s3", "s4")
    I(f"s_mul_i32 s{S_WQO}, s{S_W}, {16*8192}\ns_mul_i32 s{S_GUO}, s{S_W}, {16*3584}")
    I(f"""v_lshrrev_b32 v{T+3}, 3, v0
    v_and_b32 v{T+4}, 7, v0
    v_and_b32 v{T+5}, 6, v{T+3}
    v_xor_b32 v{T+4}, v{T+4}, v{T+5}
    v_lshlrev_b32 v{T+4}, 4, v{T+4}
    v_mul_u32_u24 v{T+3}, 3584, v{T+3}
    v_add_u32 v{V_GU}, v{T+3}, v{T+4}
    v_add_u32 v{V_GU+1}, {8*3584-1024}, v{V_GU}""")
    for qb in range(4): I(f"v_add_u32 v{V_XO+qb}, {qb*X_RB}, v{V_L16}")
    I(f"s_lshl_b32 s3, s{S_QB}, 2\ns_add_u32 s3, s3, s{S_W}\ns_lshl_b32 s{S_XO}, s3, 16")
    I(f"s_cmp_ge_u32 s{S_HD}, 28\ns_cbranch_scc1 mq_pre")

    def w_dma(tt, gu):
        I(f"s_add_u32 m0, s{S_W4K}, {LA + tt*16384}\ns_nop 0")
        for n in range(4): I(f"buffer_load_dwordx4 v{V_WQ+n}, {sr(S_WQ)}, s{S_WQO} offen offset:{1024*n} lds", dma=("WQ", tt, 0, ("A", None)))
        I(f"s_add_u32 s{S_WQO}, s{S_WQO}, {64*8192}")
        if gu:
            for m, srdn in ((0, S_WG), (1, S_WU)):
                I(f"s_add_u32 m0, s{S_W2K}, {LB + tt*16384 + m*8192}\ns_nop 0")
                for n in range(2): I(f"buffer_load_dwordx4 v{V_GU+n}, {sr(srdn)}, s{S_GUO} offen offset:{1024*n} lds", dma=("GU", tt, 0, ("B", None)))
            I(f"s_add_u32 s{S_GUO}, s{S_GUO}, {64*3584}")
    def kv_dma(kt, k=True, v=True):
        if k:
            I(f"s_add_u32 m0, s{S_W4K}, {LK + kaddr(kt)}\ns_nop 0")
            for n in range(4): I(f"buffer_load_dwordx4 v{V_KV+n}, {sr(S_K)}, s{S_KOFF} offen offset:{1024*n} lds", dma=("K", kt, 0, LK + kaddr(kt)))
            I(f"s_add_u32 s{S_KOFF}, s{S_KOFF}, 16384")
        if v:
            I(f"s_add_u32 m0, s{S_W4K}, {LV + kaddr(kt)}\ns_nop 0")
            for n in range(4): I(f"buffer_load_dwordx4 v{V_KV+n}, {sr(S_V)}, s{S_VOFF} offen offset:{1024*n} lds", dma=("V", kt, 0, LV + kaddr(kt)))
            I(f"s_add_u32 s{S_VOFF}, s{S_VOFF}, 16384")

    def proj_phase(gu, pre):
        P.L(f"{pre}_pre:")
        w_dma(0, gu)
        for n in range(8):
            qb, ks = n >> 1, n & 1
            I(f"buffer_load_dwordx4 {ar(A_X + qb*8 + ks*4)}, v{V_XO+qb}, {sr(S_XN)}, s{S_XO} offen offset:{ks*1024}")
        I(f"s_add_u32 s{S_XO}, s{S_XO}, 2048")
        w_dma(1, gu); w_dma(2, gu)
        I(f"s_lshl_b32 s3, s{S_HD}, 19")
        srd(P, S_K, 60, "s3", 0x80000); srd(P, S_V, 62, "s3", 0x80000)
        I(f"s_mov_b32 s{S_KOFF}, s{S_W4K}\ns_mov_b32 s{S_VOFF}, s{S_W4K}")
        kv_dma(0)
        srd(P, S_H, 66, WS_H, SZ_H); srd(P, S_O, 66, WS_O, SZ_O)
        I(f"s_add_u32 s{S_M0Q}, s{S_W4K}, {3*16384}\ns_add_u32 s{S_M0G}, s{S_W2K}, {LB + 3*16384}\ns_mov_b32 s{S_PASS}, 0")
        I(f"""v_and_b32 v{T+2}, 7, v{T+1}
        v_lshlrev_b32 v{T+2}, 1, v{T+2}
        v_lshrrev_b32 v{T+3}, 3, v{T+1}
        v_mul_u32_u24 v{T+3}, 9, v{T+3}
        v_xor_b32 v{T+2}, v{T+2}, v{T+3}
        v_xor_b32 v{T+2}, v{T+2}, v{T}
        v_lshlrev_b32 v{T+3}, 8, v{T+1}
        v_add_u32 v{T+3}, {LK}, v{T+3}""")
        for ds in range(4):
            I(f"v_xor_b32 v{T+4}, {4*ds}, v{T+2}\nv_lshl_add_u32 v{V_KA+ds}, v{T+4}, 4, v{T+3}")
        I(f"""v_lshrrev_b32 v{T+2}, 2, v0
        v_and_b32 v{T+3}, 7, v{T+2}
        v_lshlrev_b32 v{T+3}, 1, v{T+3}
        v_lshrrev_b32 v{T+4}, 3, v{T+2}
        v_mul_u32_u24 v{T+4}, 9, v{T+4}
        v_xor_b32 v{T+3}, v{T+3}, v{T+4}
        v_and_b32 v{T+4}, 3, v0
        v_xor_b32 v{T+5}, v{T+3}, v{T+4}
        v_lshlrev_b32 v{T+6}, 8, v{T+2}""")
        for ds in range(4):
            I(f"v_xor_b32 v{T+7}, {4*ds}, v{T+5}\nv_lshl_add_u32 v{V_QA+ds}, v{T+7}, 4, v{T+6}")
        I(f"""v_bfe_u32 v{T+4}, v0, 1, 1
        v_xor_b32 v{T+5}, v{T+3}, v{T+4}
        v_and_b32 v{T+7}, 1, v0
        v_lshl_add_u32 v{T+6}, v{T+7}, 3, v{T+6}
        v_add_u32 v{T+6}, {LV}, v{T+6}""")
        for db in range(8):
            I(f"v_xor_b32 v{T+8}, {2*db}, v{T+5}\nv_lshl_add_u32 v{V_VA+db}, v{T+8}, 4, v{T+6}")
        if gu:
            I(f"""v_and_b32 v{T+3}, 6, v{T+2}
            v_xor_b32 v{T+5}, v{T+3}, v{T+4}
            v_lshlrev_b32 v{T+6}, 7, v{T+2}
            v_lshl_add_u32 v{T+6}, v{T+7}, 3, v{T+6}
            v_add_u32 v{T+6}, {LB}, v{T+6}""")
            for fb in range(4):
                I(f"v_xor_b32 v{T+8}, {2*fb}, v{T+5}\nv_lshl_add_u32 v{V_GA+fb}, v{T+8}, 4, v{T+6}")
        I(f"""v_and_b32 v{T+3}, 1, v0
        v_mov_b32 v{T+4}, 0xaaaaaaaa
        v_mul_lo_u32 v{T+3}, v{T+3}, v{T+4}
        v_add_u32 v{V_IDX}, 0x44444444, v{T+3}
        v_mov_b32 v{T+4}, 0x3f803f80""")
        for i in range(4): I(f"v_accvgpr_write_b32 a{A_ONE+i}, v{T+4}")
        for i in range(16): I(f"v_mov_b32 v{V_CI+i}, 0")
        for i in range(128): I(f"v_mov_b32 v{V_S+i}, 0")
        if gu:
            for i in range(64): I(f"v_mov_b32 v{V_P+i}, 0\nv_accvgpr_write_b32 a{A_G+i}, 0")
        ST(1)
        P.add(WV("vmbar")); I("s_barrier")
        ST(2)
        mf, G, blks, acc = proj_step(P, 0, gu, True, False)
        for bi in range(2):
            m, i = blks[bi]
            for k in range(4):
                ks, half = k >> 1, k & 1
                if m in "XY": I(f"ds_read_b64_tr_b16 {ar(A_V + bi*8 + ks*4 + half*2, 2)}, v{V_QA+i} offset:{ks*8192 + half*4096 + (8 if m=='Y' else 0)}", rd=("WQ", 0, 0, ("A", None)))
                else: I(f"ds_read_b64_tr_b16 {ar(A_V + bi*8 + ks*4 + half*2, 2)}, v{V_GA+i} offset:{(8192 if m=='U' else 0) + ks*4096 + half*2048}", rd=("GU", 0, 0, ("B", None)))
        I(f"s_mov_b32 s{S_CNT}, 0")
        P.add(WL())
        P.L(f".p2align 3\n{pre}_loop:"); P.L(f"{pre}_loop_:")
        emit_gaps(P, mf, G)
        mf, G, blks, acc = proj_step(P, 1, gu, True, False)
        G.sfirst(G.n - 6, Ins(f"s_add_u32 s{S_CNT}, s{S_CNT}, 1"), back=True)
        G.sfirst(G.n - 3, Ins(f"s_cmp_lt_u32 s{S_CNT}, 3"), back=True)
        emit_gaps(P, mf, G)
        I(f"s_cbranch_scc1 {pre}_loop")
        P.L(f"{pre}_tail:")
        mf, G, blks, acc = proj_step(P, 6, gu, False, False)
        emit_gaps(P, mf, G)
        mf, G, blks, acc = proj_step(P, 7, gu, False, True)
        N = G.n
        G.sfirst(N // 2 - 1, WV("vmbar"), back=True)
        for i in range(8):
            kb, ds = i >> 2, i & 3
            G.first(N - 16 + 8 * kb + ds, "D", Ins(f"ds_read_b128 {ar(A_K + kb*16 + ds*4)}, v{V_KA+ds} offset:{kaddr(0) + kb*4096}", rd=("K", 0, 0, LK + kaddr(0))))
        late = []
        if gu:
            g = 0
            G.sfirst(1, Ins(f"s_lshl_b32 s{S_T0}, s{S_QB}, 2")); G.sfirst(2, Ins(f"s_add_u32 s{S_T0}, s{S_T0}, s{S_W}"))
            G.sfirst(3, Ins(f"s_mul_i32 s{S_T0}, s{S_T0}, {4*H_RB}")); G.sfirst(4, Ins(f"s_lshl_b32 s{S_T1}, s{S_HD}, 11"))
            G.sfirst(5, Ins(f"s_add_u32 s{S_T0}, s{S_T0}, s{S_T1}"))
            for qb in range(4): G.first(4 + qb, "V", Ins(f"v_add_u32 v{V_XO+qb}, {qb*H_RB}, v{V_L16}"))
            for fb in range(4):
                for qb in range(4):
                    rdy = (2 * fb + 1) * 8 + 2 * qb + 1 + 5
                    g = max(g, rdy)
                    tmp = V_T + 3 + ((fb * 4 + qb) & 1) * 4
                    u = V_P + (fb * 4 + qb) * 4
                    dst = V_P + ((fb & 2) * 4 + qb) * 4 + (fb & 1) * 2
                    for r in range(4): g = G.first(g, "V", Ins(f"v_accvgpr_read_b32 v{tmp+r}, a{A_G + (fb*4+qb)*4 + r}"))
                    for r in range(4): g = G.first(g, "V", Ins(f"v_mul_f32 v{tmp+r}, v{tmp+r}, v{u+r}"))
                    for r in range(2): g = G.first(g, "V", Ins(f"v_cvt_pk_bf16_f32 v{dst+r}, v{tmp+2*r}, v{tmp+2*r+1}"))
                    if fb & 1:
                        late.append(Ins(f"buffer_store_dwordx4 {vr(V_P + ((fb&2)*4+qb)*4)}, v{V_XO+qb}, {sr(S_H)}, s{S_T0} offen offset:{(fb>>1)*1024}"))
        q0 = N - 64; g2 = 0; tailq = []
        for ds in range(4):
            for qb in range(4):
                x = V_Q + (ds * 4 + qb) * 4; y = V_S + (ds * 4 + qb) * 4
                rdy = q0 + (2 * ds + 1) * 8 + 2 * qb + 1 + 5
                for d, s in ((x, x), (x + 1, x + 2), (x + 2, y), (x + 3, y + 2)):
                    ins = Ins(f"v_cvt_pk_bf16_f32 v{d}, v{s}, v{s+1}")
                    gg = max(g2, rdy)
                    while gg < N and not G.fits(gg, "V"): gg += 1
                    if gg < N and not tailq: g2 = G.put(gg, "V", ins)
                    else: tailq.append(ins)
        emit_gaps(P, mf, G)
        for x in late + tailq: P.add(x)
        for i in range(16): I(f"v_mov_b32 v{V_L+i}, 0")
        P.L(f"{pre}_done:")

    proj_phase(True, "mg")
    P.L("att_pro:")
    ST(3)
    TB = att_table()
    def iteration(i, stride, have, do_qk=True, do_pv=True, first_pv=False, lo=0, hi=NIT, extra=None):
        mf = att_mfmas(i & 1, do_qk, do_pv, first_pv)
        def res(it):
            r = att_res(it, i, stride, have)
            if extra and it in extra: return extra[it] + ([r] if r else [])
            return r
        emit_gaps(P, mf, TB, lo, hi, res)
    def prologue():
        have = lambda k, t: t >= 0 and not (k == "dmav" and t == 2)
        k3 = [Ins(f"s_add_u32 m0, s{S_W4K}, {LK + kaddr(3)}"), Ins("s_nop 0")] + \
             [Ins(f"buffer_load_dwordx4 v{V_KV+n}, {sr(S_K)}, s{S_KOFF} offen offset:{1024*n} lds", dma=("K", 3, 0, LK + kaddr(3))) for n in range(4)] + \
             [Ins(f"s_add_u32 s{S_KOFF}, s{S_KOFF}, 16384")]
        P.add(WL())
        iteration(-1, 0, have, do_pv=False, extra={("m0v",): k3})
    prologue()
    if PREF_POST:
        I("s_load_dwordx2 s[56:57], s[0:1], 32\ns_load_dwordx2 s[58:59], s[0:1], 64\ns_waitcnt lgkmcnt(0)")
        srd(P, 60, 56, 0, 0x400000); srd(P, 64, 58, 0, 1792*1024)
        I(f"s_lshl_b32 s56, s2, 2\ns_add_u32 s56, s56, s{S_W}\ns_lshl_b32 s57, s56, 12\ns_lshl_b32 s56, s56, 11\nv_lshlrev_b32 v19, 2, v{V_L16}\nv_lshlrev_b32 v21, 1, v{V_L16}")
        I("buffer_load_dword v20, v19, s[60:63], s57 offen\nbuffer_load_dword v22, v21, s[64:67], s56 offen")
    P.L("att_it0:")
    ST(4)
    allh = lambda k, t: True
    iteration(0, 0, allh, first_pv=True)
    I(f"s_mov_b32 s{S_CNT}, 0\ns_branch att_l1")
    P.L("att_j:")
    P.L(".p2align 3\natt_loop:"); P.L("att_l_:")
    iteration(-1, 4, allh); iteration(0, 4, allh)
    P.L("att_l1:")
    iteration(1, 4, allh)
    iteration(2, 4, allh, extra={("adv",): [Ins(f"s_add_u32 s{S_CNT}, s{S_CNT}, 1")]}, hi=NIT)
    I(f"s_cmp_lt_u32 s{S_CNT}, 8\ns_cbranch_scc1 att_loop")
    P.L("att_tail:")
    ST(5)
    have = lambda k, t: t <= 31
    iteration(31, 0, have, do_qk=False)
    P.L("att_epi:")
    ST(6)
    T = V_S
    I(f"s_lshl_b32 s{S_T0}, s{S_QB}, 2\ns_add_u32 s{S_T0}, s{S_T0}, s{S_W}\ns_lshl_b32 s{S_T0}, s{S_T0}, 19\ns_lshl_b32 s{S_T1}, s{S_HD}, 12\ns_add_u32 s{S_T0}, s{S_T0}, s{S_T1}")
    lo, hi_ = hex(f2u(2.0 ** -24)), hex(f2u(2.0 ** 48))
    I(f"s_mov_b32 s56, {lo}\ns_mov_b32 s57, {hi_}\ns_mov_b64 s[58:59], -1")
    for qb in range(4):
        I(f"v_add_f32 v{T+qb}, v{V_L+4*qb}, v{V_L+4*qb+1}")
        I(f"v_cmp_le_f32 vcc, s56, v{T+qb}\ns_and_b64 s[58:59], s[58:59], vcc\nv_cmp_ge_f32 vcc, s57, v{T+qb}\ns_and_b64 s[58:59], s[58:59], vcc")
        I(f"v_rcp_f32 v{T+4+2*qb}, v{T+qb}\nv_add_u32 v{T+12+qb}, {qb*O_RB}, v{V_L16}")
    for i in range(8): I(f"v_mov_b32 v{T+16+i}, 0")
    n = 0
    for t in range(4):
        for qb in range(4):
            tmp = T + 24 + (n % 3) * 12; n += 1
            for hb in range(2):
                o = A_O + ((2 * t + hb) * 4 + qb) * 4
                for r in range(4): I(f"v_accvgpr_read_b32 v{tmp+4*hb+r}, a{o+r}")
            for r in range(4): I(f"v_pk_mul_f32 {vr(tmp+2*r,2)}, {vr(tmp+2*r,2)}, {vr(T+4+2*qb,2)} op_sel_hi:[1,0]")
            for r in range(4): I(f"v_cvt_pk_bf16_f32 v{tmp+8+r}, v{tmp+2*r}, v{tmp+2*r+1}")
            I(f"buffer_store_dwordx4 {vr(tmp+8)}, v{T+12+qb}, {sr(S_O)}, s{S_T0} offen offset:{t*1024}")
            I(f"{MF} {vr(T+20)}, {vr(T+16)}, {vr(tmp+8)}, {vr(T+20)}")
    I(f"s_cmp_lg_u32 s{S_PASS}, 0\ns_cbranch_scc1 m_fin")
    P.L("att_chk:")
    I(f"v_cmp_o_f32 vcc, v{T+20}, v{T+20}\ns_and_b64 s[58:59], s[58:59], vcc\ns_cmp_eq_u64 s[58:59], -1\ns_cselect_b32 s56, 0, 1")
    I(f"v_mov_b32 v{T}, s56\nv_mov_b32 v{T+1}, s{S_W}\nv_lshlrev_b32 v{T+1}, 2, v{T+1}\nds_write_b32 v{T+1}, v{T}\nv_mov_b32 v{T+1}, 0")
    I(f"s_waitcnt lgkmcnt(0)\ns_barrier\nds_read_b128 {vr(T+4)}, v{T+1}\ns_waitcnt lgkmcnt(0)")
    I(f"v_or_b32 v{T+4}, v{T+4}, v{T+5}\nv_or3_b32 v{T+4}, v{T+4}, v{T+6}, v{T+7}\nv_readfirstlane_b32 s56, v{T+4}\ns_cmp_eq_u32 s56, 0\ns_cbranch_scc1 m_fin")
    P.L("fb_a:")
    MX = V_L
    I(f"s_mov_b32 s{S_PASS}, 1\ns_mov_b32 s{S_KOFF}, s{S_W4K}\ns_mov_b32 s{S_CNT}, 0\ns_waitcnt vmcnt(0)")
    for qb in range(4): I(f"v_mov_b32 v{MX+qb}, 0xff800000")
    P.L("fb_loop:")
    I(f"s_barrier\ns_add_u32 m0, s{S_W4K}, {LK}\ns_nop 0")
    for n in range(4): I(f"buffer_load_dwordx4 v{V_KV+n}, {sr(S_K)}, s{S_KOFF} offen offset:{1024*n} lds", dma=("FK", 0, 1, LK))
    I(f"s_add_u32 s{S_KOFF}, s{S_KOFF}, 16384\ns_waitcnt vmcnt(0)\ns_barrier")
    for kb in range(4):
        for ds in range(4): I(f"ds_read_b128 {ar(A_K + kb*16 + ds*4)}, v{V_KA+ds} offset:{kb*4096}", rd=("FK", 0, 1, LK))
        I("s_waitcnt lgkmcnt(0)")
    for kb in range(4):
        for qb in range(4):
            s = V_S + (kb * 4 + qb) * 4
            for ds in range(4): I(f"{MF} {vr(s)}, {ar(A_K + kb*16 + ds*4)}, {vr(V_Q + (ds*4+qb)*4)}, {'0' if ds==0 else vr(s)}")
    for kb in range(4):
        for qb in range(4):
            s = V_S + (kb * 4 + qb) * 4
            I(f"v_max3_f32 v{MX+qb}, v{MX+qb}, v{s}, v{s+1}\nv_max3_f32 v{MX+qb}, v{MX+qb}, v{s+2}, v{s+3}")
    I(f"s_add_u32 s{S_CNT}, s{S_CNT}, 1\ns_cmp_lt_u32 s{S_CNT}, 32\ns_cbranch_scc1 fb_loop")
    P.L("fb_b:")
    for qb in range(4):
        m, t = MX + qb, MX + 4 + qb
        I(f"v_mov_b32 v{t}, v{m}\nv_permlane32_swap_b32 v{m}, v{t}\nv_max_f32 v{m}, v{m}, v{t}")
        I(f"v_mov_b32 v{t}, v{m}\nv_permlane16_swap_b32 v{m}, v{t}\nv_max_f32 v{m}, v{m}, v{t}")
        for r in range(4): I(f"v_sub_f32 v{V_CI+4*qb+r}, 0, v{m}")
    for i in range(16): I(f"v_mov_b32 v{V_L+i}, 0")
    I(f"s_mov_b32 s{S_KOFF}, s{S_W4K}\ns_mov_b32 s{S_VOFF}, s{S_W4K}\ns_barrier")
    for kt in range(3): kv_dma(kt)
    I("s_waitcnt vmcnt(0)\ns_barrier")
    for i in range(8):
        kb, ds = i >> 2, i & 3
        I(f"ds_read_b128 {ar(A_K + kb*16 + ds*4)}, v{V_KA+ds} offset:{kaddr(0) + kb*4096}", rd=("K", 0, 0, LK + kaddr(0)))
    I("s_waitcnt lgkmcnt(0)\ns_branch att_pro")
    P.L("fb_z:")
    T = V_T
    proj_phase(False, "mq")
    I("s_branch att_pro")
    P.L("mq_z:")
    P.L("m_fin:")
    if DIAG:
        ST(7); I("s_waitcnt vmcnt(0)"); ST(8); ST.dump(66, S_W)
    P.L("m_end:"); I("s_endpgm"); P.L("m_z:")

    att = [("att_pro:", "att_j:", 1), ("att_l1:", "att_tail:", 1)]
    def tf():
        body = P.seg("att_l_:", "att_tail:")
        full = []
        for t in range(1, 8): full += [(x, t) for x in body]
        A = P.trace(att) + full + P.trace([("att_tail:", "att_chk:", 1)])
        out = []
        for pre, end in (("mg", "mg_done:"), ("mq", "mq_z:")):
            tr = P.trace([("m_a:", "mg_pre:", 1), (f"{pre}_pre:", f"{pre}_loop_:", 1), (f"{pre}_loop_:", f"{pre}_tail:", 3), (f"{pre}_tail:", end, 1)]) + A
            out.append(tr + P.trace([("att_chk:", "fb_a:", 1), ("m_fin:", "m_z:", 1)]))
        out.append(out[0][:-len(P.seg("m_fin:", "m_z:"))] + P.trace([("fb_a:", "fb_loop:", 1), ("fb_loop:", "fb_b:", 3), ("fb_b:", "fb_z:", 1)]) + A)
        return out
    finish(P, tf, "main")
    return P

def gen_post():
    P = Prog(); I = P.I
    header(P, "post_kernel"); P.L("p_a:")
    S_WD, S_WO, S_HH, S_OO, S_X, S_OUT = 8, 12, 16, 20, 24, 28
    SW, SRT, SNT, SM0, SWO, SBO = 32, 33, 34, 35, 36, 37
    V_W, V_BH, V_BO, V_A, VL, T = 1, 5, 9, 13, 17, 18
    ACC_D, ACC_S = 64, 128
    A_B, A_A = 0, 128
    I("s_cmp_ge_u32 s2, 256\ns_cbranch_scc1 p_end")
    ST = Stamper(P, 2); ST(0)
    I("""s_load_dwordx2 s[60:61], s[0:1], 0
    s_load_dwordx2 s[62:63], s[0:1], 32
    s_load_dwordx4 s[64:67], s[0:1], 64
    s_load_dwordx2 s[68:69], s[0:1], 88""")
    I(f"""v_lshrrev_b32 v1, 6, v0
    v_and_b32 v0, 63, v0
    s_and_b32 s3, s2, 7
    v_readfirstlane_b32 s{SW}, v1
    s_lshr_b32 s4, s2, 3
    s_and_b32 s5, s4, 3
    s_lshl_b32 s3, s3, 2
    s_add_u32 s{SRT}, s3, s5
    s_lshr_b32 s{SNT}, s4, 2
    v_lshlrev_b32 v{VL}, 4, v0
    v_lshrrev_b32 v{T}, 3, v0
    v_and_b32 v{T+1}, 7, v0
    v_and_b32 v{T+2}, 6, v{T}
    v_xor_b32 v{T+1}, v{T+1}, v{T+2}
    v_lshlrev_b32 v{T+1}, 4, v{T+1}
    v_lshl_add_u32 v{V_W}, v{T}, 10, v{T+1}""")
    for n in range(1, 4): I(f"v_add_u32 v{V_W+n}, {n*(8192-1024)}, v{V_W}")
    for qb in range(4):
        I(f"s_xor_b32 s3, s{SW}, {qb}\ns_mul_i32 s4, s3, {H_RB}\ns_lshl_b32 s5, s3, 17\nv_add_u32 v{V_BH+qb}, s4, v{VL}\nv_add_u32 v{V_BO+qb}, s5, v{VL}")
    I("s_waitcnt lgkmcnt(0)")
    I(f"s_lshl_b32 s3, s{SNT}, 7\ns_sub_u32 s4, {1792*1024}, s3\ns_sub_u32 s5, {4096*1024}, s3")
    srd(P, S_WD, 64, "s3", "s4"); srd(P, S_HH, 68, WS_H, SZ_H)
    srd(P, S_WO, 62, "s3", "s5"); srd(P, S_OO, 68, WS_O, SZ_O)
    I(f"s_lshl_b32 s{SM0}, s{SW}, 15")
    steps = [("d", i) for i in range(7)] + [("s", i) for i in range(16)]
    def issue(n):
        kind, i = steps[n]; slot = n & 3; out = []
        if i == 0:
            if kind == "d":
                out += [Ins(f"s_mul_i32 s{SWO}, s{SW}, {7*65536}"), Ins(f"s_mul_i32 s{SBO}, s{SRT}, {4*H_RB}"), Ins(f"s_mul_i32 s3, s{SW}, {7*2048}"), Ins(f"s_add_u32 s{SBO}, s{SBO}, s3")]
            else:
                out += [Ins(f"s_lshl_b32 s{SWO}, s{SW}, 20"), Ins(f"s_lshl_b32 s{SBO}, s{SRT}, 19"), Ins(f"s_lshl_b32 s3, s{SW}, 15"), Ins(f"s_add_u32 s{SBO}, s{SBO}, s3")]
        sw, sb, vb = (S_WD, S_HH, V_BH) if kind == "d" else (S_WO, S_OO, V_BO)
        for hf in range(2):
            out += [Ins(f"s_add_u32 m0, s{SM0}, {slot*8192 + hf*4096}")]
            ld = [Ins(f"buffer_load_dwordx4 {ar(A_B + slot*32 + qb*8 + hf*4)}, v{vb+qb}, {sr(sb)}, s{SBO} offen offset:{hf*1024}") for qb in range(4)]
            dm = [Ins(f"buffer_load_dwordx4 v{V_W+k}, {sr(sw)}, s{SWO} offen offset:{k*1024} lds", dma=("p_W", n, 0, ("P", slot))) for k in range(4)]
            out += [ld[0]] + dm + ld[1:] + [Ins(f"s_add_u32 s{SWO}, s{SWO}, 32768")]
        out += [Ins(f"s_add_u32 s{SBO}, s{SBO}, 2048")]
        return out
    for n in range(3):
        for x in issue(n): P.add(x)
    srd(P, S_X, 60, 0, 0x200000); srd(P, S_OUT, 66, 0, 0x200000)
    I(f"""v_lshrrev_b32 v{T+2}, 2, v0
    v_and_b32 v{T+3}, 6, v{T+2}
    v_bfe_u32 v{T+4}, v0, 1, 1
    v_xor_b32 v{T+5}, v{T+3}, v{T+4}
    v_and_b32 v{T+7}, 1, v0
    v_lshlrev_b32 v{T+6}, 7, v{T+2}
    v_lshl_add_u32 v{T+6}, v{T+7}, 3, v{T+6}
    v_add_u32 v{T+6}, s{SM0}, v{T+6}""")
    for nb in range(4): I(f"v_xor_b32 v{T+8}, {2*nb}, v{T+5}\nv_lshl_add_u32 v{V_A+nb}, v{T+8}, 4, v{T+6}")
    def rd(n, nb, k):
        ks, half = k >> 1, k & 1
        return Ins(f"ds_read_b64_tr_b16 {ar(A_A + nb*8 + ks*4 + half*2, 2)}, v{V_A+nb} offset:{(n&3)*8192 + ks*4096 + half*2048}", rd=("p_W", n, 0, ("P", n & 3)))
    ST(1)
    P.add(WV())
    ST(2)
    for nb in range(2):
        for k in range(4): P.add(rd(0, nb, k))
    P.add(WL())
    for n, (kind, i) in enumerate(steps):
        acc = ACC_D if kind == "d" else ACC_S
        mf = []
        for j in range(32):
            nb, qb, k = j >> 3, (j >> 1) & 3, j & 1; ks = k if qb % 2 == 0 else 1 - k
            a = vr(acc + (nb * 4 + qb) * 4)
            mf.append(Ins(f"{MF} {a}, {ar(A_A + nb*8 + ks*4)}, {ar(A_B + (n&3)*32 + qb*8 + ks*4)}, {'0' if (i==0 and k==0) else a}"))
        G = Gaps(32)
        for nb in range(4):
            if nb < 2:
                for k in range(4): G.put(nb * 8 + k // 2, "D", rd(n, nb + 2, k))
            elif n + 1 < len(steps):
                for k in range(4): G.put(nb * 8 + k // 2, "D", rd(n + 1, nb - 2, k))
            G.scal(nb * 8 + 7, WL())
        if n + 1 < len(steps): G.scal(15, WV())
        if n + 3 < len(steps):
            free = [g for g in range(32) if g % 8 >= 2]
            fi = 0
            for x in issue(n + 3):
                if x.kind == "vmem": G.put(free[fi], "M", x, force=True); fi += 1
                else: G.scal(free[fi], x)
        emit_gaps(P, mf, G)
        if n == 6: ST(3)
        if n == 14: ST(4)
    ST(5)
    I(f"""s_lshl_b32 s3, s{SRT}, 2
    s_add_u32 s3, s3, s{SW}
    s_lshl_b32 s3, s3, 14
    s_lshl_b32 s4, s{SNT}, 7
    s_add_u32 s3, s3, s4
    v_and_b32 v{T}, 15, v0
    v_lshrrev_b32 v{T+1}, 4, v0
    v_lshlrev_b32 v{T+1}, 3, v{T+1}
    v_lshl_add_u32 v{T}, v{T}, 10, v{T+1}""")
    XR = 32
    for nb in range(4): I(f"buffer_load_dwordx2 {vr(XR+2*nb,2)}, v{T}, {sr(S_X)}, s3 offen offset:{32*nb}")
    I("s_barrier")
    for qb in range(1, 4):
        I(f"s_xor_b32 s4, s{SW}, {qb}\ns_mul_i32 s4, s4, 24576\ns_add_u32 s4, s4, {(qb-1)*8192}\nv_add_u32 v{T+1+qb}, s4, v{VL}")
        for m, acc in enumerate((ACC_D, ACC_S)):
            for nb in range(4): I(f"ds_write_b128 v{T+1+qb}, {vr(acc + (nb*4+qb)*4)} offset:{(m*4+nb)*1024}")
    I(f"s_mul_i32 s4, s{SW}, 24576\nv_add_u32 v{T+1}, s4, v{VL}\ns_waitcnt lgkmcnt(0)\ns_barrier")
    for j in range(3):
        for m, acc in enumerate((ACC_D, ACC_S)):
            for nb in range(4): I(f"ds_read_b128 {vr(acc + (nb*4+1+j)*4)}, v{T+1} offset:{j*8192 + (m*4+nb)*1024}")
        I("s_waitcnt lgkmcnt(0)")
    for acc in (ACC_D, ACC_S):
        for nb in range(4):
            b = acc + nb * 16
            for r in range(4): I(f"v_add_f32 v{b+r}, v{b+r}, v{b+4+r}\nv_add_f32 v{b+8+r}, v{b+8+r}, v{b+12+r}")
            for r in range(4): I(f"v_add_f32 v{b+r}, v{b+r}, v{b+8+r}")
    I(f"s_mov_b32 s4, {hex(f2u(1/(CSC*CSC)))}\ns_mov_b32 s5, {hex(f2u(-math.log2(math.e)))}\ns_waitcnt vmcnt(0)")
    for nb in range(4):
        d = ACC_D + nb * 16; s = ACC_S + nb * 16
        for r in range(4): I(f"v_mul_f32 v{d+r}, s4, v{d+r}")
        for r in range(4): I(f"v_mul_f32 v{d+4+r}, s5, v{d+r}")
        for r in range(4): I(f"v_exp_f32 v{d+4+r}, v{d+4+r}")
        for r in range(4): I(f"v_add_f32 v{d+4+r}, 1.0, v{d+4+r}")
        for r in range(4): I(f"v_rcp_f32 v{d+4+r}, v{d+4+r}")
        for r in range(2): I(f"v_lshlrev_b32 v{d+8+2*r}, 16, v{XR+2*nb+r}\nv_and_b32 v{d+9+2*r}, 0xffff0000, v{XR+2*nb+r}")
        for r in range(4): I(f"v_mul_f32 v{d+r}, v{d+r}, v{d+4+r}")
        for r in range(4): I(f"v_fmac_f32 v{d+8+r}, v{d+r}, v{s+r}")
        for r in range(2): I(f"v_cvt_pk_bf16_f32 v{d+12+r}, v{d+8+2*r}, v{d+9+2*r}")
        I(f"buffer_store_dwordx2 {vr(d+12,2)}, v{T}, {sr(S_OUT)}, s3 offen offset:{32*nb}")
    if DIAG:
        ST(6); I("s_waitcnt vmcnt(0)"); ST(7); ST.dump(68, SW)
    P.L("p_end:"); I("s_endpgm"); P.L("p_z:")
    tf = lambda: [P.trace([("p_a:", "p_z:", 1)])]
    finish(P, tf, "post")
    return P

def build(path):
    ref = open(f"cdna_kernels/{KN}.s.ref").read().split("\n")
    head = [l for l in ref if l.startswith(";") and "@launch" not in l and "Override launch" not in l and "grid=ceil" not in l]
    out = "\n".join(head) + "\n"
    out += "; @launch kernel=ln_kernel grid=(256,1,1) block=(256,1,1) lds=0\n"
    out += "; @launch kernel=main_kernel grid=(256,1,1) block=(256,1,1) lds=163840\n"
    out += "; @launch kernel=post_kernel grid=(256,1,1) block=(256,1,1) lds=131072\n"
    out += '.amdgcn_target "amdgcn-amd-amdhsa--gfx950"\n.text\n'
    out += gen_ln().text() + gen_main().text() + gen_post().text()
    out += '.section .rodata,"a"\n' + descriptor("ln_kernel", 40, 40, 48) + descriptor("main_kernel", 512, 256) + descriptor("post_kernel", 512, 256)
    open(path, "w").write(out)

if __name__ == "__main__":
    if "diag" in sys.argv[2:]: DIAG = 1
    if "diag2" in sys.argv[2:]: DIAG = 2
    build(sys.argv[1] if len(sys.argv) > 1 else f"cdna_kernels/{KN}.s")
```
